```python
import torch

def _softmax(x, axis=-1):
    return torch.softmax(x, dim=axis)
def _gelu(x):
    return torch.nn.functional.gelu(x, approximate="tanh")
def _silu(x):
    return torch.nn.functional.silu(x)
def _sigmoid(x):
    return torch.sigmoid(x)
def _layernorm(x, axis=-1, eps=1e-5):
    m = x.mean(dim=axis, keepdim=True)
    v = x.var(dim=axis, keepdim=True, unbiased=False)
    return (x - m) / torch.sqrt(v + eps)
def _scatter_add(tgt, idx, src, axis=0):
    return tgt.clone().index_add_(axis, idx, src)
def _segment_sum(src, seg, n):
    out = torch.zeros((n,) + src.shape[1:], dtype=src.dtype)
    return out.index_add_(0, seg, src)
def _pad(x, pw):
    flat = tuple(v for pair in reversed(pw) for v in pair)
    return torch.nn.functional.pad(x, flat)

kernel_name = 'recurrent_scan__mha_block_cached__dense_activation_squared_relu__decode'

def setup_inputs():

    _w = (lambda a: (lambda t: t.to(torch.bfloat16) if t.is_floating_point() else t)(torch.as_tensor(a)))
    def _A_setup():
        B, Sq, D = 2, 1, 640
        H, Sk, Dh = 32, 8192, 128
        return {
            "x": _w((lambda *s: torch.randn(*s, dtype=torch.bfloat16) * 0.05)(B, Sq, D)),
            "k_cache": _w((lambda *s: torch.randn(*s, dtype=torch.bfloat16) * 0.8)(B, H, Sk, Dh)),
            "v_cache": _w((lambda *s: torch.randn(*s, dtype=torch.bfloat16) * 0.2)(B, H, Sk, Dh)),
            "wq": _w((lambda *s: torch.randn(*s, dtype=torch.bfloat16) * 0.8)(D, H * Dh) * (D ** -0.5)),
            "wo": _w((lambda *s: torch.randn(*s, dtype=torch.bfloat16) * 0.2)(H * Dh, D) * ((H * Dh) ** -0.5)),
        }
    _A_in = _A_setup()

    def _B_setup():
        B, S, D, F = 2, 1, 640, 1728
        return {
            "x": _w((lambda *s: torch.randn(*s, dtype=torch.bfloat16) * 0.05)(B, S, D)),
            "w1": _w((lambda *s: torch.randn(*s, dtype=torch.bfloat16) * 0.1)(D, F)),
            "b1": _w((lambda *s: torch.randn(*s, dtype=torch.bfloat16) * 0.1)(F)),
            "w2": _w((lambda *s: torch.randn(*s, dtype=torch.bfloat16) * 0.1)(F, D)),
            "b2": _w((lambda *s: torch.randn(*s, dtype=torch.bfloat16) * 0.1)(D)),
        }
    _B_in = _B_setup()

    return {
        "A_x": _A_in["x"],
        "A_k_cache": _A_in["k_cache"],
        "A_v_cache": _A_in["v_cache"],
        "A_wq": _A_in["wq"],
        "A_wo": _A_in["wo"],
        "B_x": _B_in["x"],
        "B_w1": _B_in["w1"],
        "B_b1": _B_in["b1"],
        "B_w2": _B_in["w2"],
        "B_b2": _B_in["b2"],
    }

def reference(A_x, A_k_cache, A_v_cache, A_wq, A_wo, B_x, B_w1, B_b1, B_w2, B_b2):
    def _A_ref(x, k_cache, v_cache, wq, wo):
        B, Sq, D = x.shape
        H, Dh = 32, 128
        q = (lambda x, *d: x.permute(*d))((x @ wq).reshape(B, Sq, H, Dh), 0, 2, 1, 3)
        scores = torch.einsum("bhqd,bhkd->bhqk", q, k_cache) * (Dh ** -0.5)
        p = _softmax(scores, axis=-1)
        o = torch.einsum("bhqk,bhkd->bhqd", p, v_cache)
        return (lambda x, *d: x.permute(*d))(o, 0, 2, 1, 3).reshape(B, Sq, H * Dh) @ wo

    def _B_ref(x, w1, b1, w2, b2):
        h = torch.einsum("bsd,df->bsf", x, w1) + b1
        zero = torch.zeros_like(h)
        r = torch.where(h > zero, h, zero)
        h = r * r
        out = torch.einsum("bsf,fd->bsd", h, w2) + b2
        return out

    x = A_x
    xn = _layernorm(x, axis=-1)
    s = _A_ref(xn, A_k_cache, A_v_cache, A_wq, A_wo)
    g = _silu(_B_ref(xn, B_w1, B_b1, B_w2, B_b2))
    return x + s * g
```

```python
import sys, math, struct

NAME = "recurrent_scan__mha_block_cached__dense_activation_squared_relu__decode"

HEADER = """; Kernarg layout for this problem (104 bytes, ptrs only, base s[0:1]):
"""

def f2u(x):
    return struct.unpack('<I', struct.pack('<f', x))[0]

YIN = 0
YIN_SZ = 2*20*128*128
FIN = YIN + YIN_SZ
FIN_SZ = 2*20*216*128
MLIN = FIN + FIN_SZ
MLIN_SZ = 64*128
WS_USED = MLIN + MLIN_SZ
STAMP = 4 << 20

L_XN = 0
L_QP = 5120
L_MLW = L_QP + 2048
L_FAC = L_MLW + 32
L_OP = L_FAC + 32
L_YP = L_OP + 2048
LDS_SZ = L_YP + 4*640*4

class G:
    def __init__(self):
        self.L = []
    def __call__(self, s):
        self.L.append('  ' + s)
    def label(self, s):
        self.L.append(s + ':')
    def c(self, s):
        self.L.append('  ; ' + s)

def vr(a, n=4):
    return f'v[{a}:{a+n-1}]'

def gen(NS=2, QCAP=8, WCAP=8, rot=1, diag=False, wnt='', mimic=True, hfirst=True, kvmod=' nt', spin=1<<17):
    R = NS * 16
    g = G()
    stamp_n = [0]
    def stamp(idx):
        if diag:
            g(f's_memrealtime s[76:77]')
            g('s_waitcnt lgkmcnt(0)')
            g(f's_mov_b32 s{80+idx}, s76')
    def stamp_flush():
        if diag:
            g('s_lshl_b32 s76, s2, 3')
            g('s_add_u32 s76, s76, s3')
            g('s_lshl_b32 s76, s76, 6')
            g(f's_add_u32 s76, s76, {STAMP}')
            g('s_mov_b64 exec, 1')
            for q in range(4):
                for r in range(4):
                    g(f'v_mov_b32 v{4+r}, s{80+4*q+r}')
                g('v_mov_b32 v8, 0')
                g(f'buffer_store_dwordx4 v[4:7], v8, s[72:75], s76 offen offset:{16*q}')
                g('s_nop 1')
            g('s_waitcnt vmcnt(0)')

    g('s_cmp_ge_u32 s2, 256')
    g('s_cbranch_scc1 L_exit')
    if diag:
        g('s_memrealtime s[78:79]')
    g('s_load_dwordx16 s[16:31], s[0:1], 0')
    g('s_load_dwordx8 s[32:39], s[0:1], 64')
    g('s_load_dwordx2 s[40:41], s[0:1], 96')
    g('v_lshrrev_b32 v1, 6, v0')
    g('v_and_b32 v0, 63, v0')
    g('v_readfirstlane_b32 s3, v1')
    g('s_and_b32 s4, s2, 7')
    g('s_lshr_b32 s5, s2, 3')
    g('s_lshr_b32 s6, s5, 3')
    g('s_lshl_b32 s7, s4, 2')
    g('s_add_u32 s6, s6, s7')
    g('s_bfe_u32 s7, s5, 0x10002')
    g('s_and_b32 s8, s5, 3')
    g('s_lshl_b32 s9, s7, 5')
    g('s_add_u32 s9, s9, s6')
    g('s_and_b32 s10, s3, 3')
    g('v_and_b32 v2, 1, v0')
    g('v_lshlrev_b32 v2, 4, v2')
    g('v_mov_b32 v3, 0xffff')
    g('v_lshlrev_b32 v3, v2, v3')
    g('v_bfe_u32 v2, v0, 1, 2')
    for t in range(4):
        g(f'v_cmp_eq_u32 vcc, {t}, v2')
        g('s_nop 1')
        g(f'v_cndmask_b32 v{6+t}, 0, v3, vcc')
    if diag:
        for i in range(16):
            g(f's_mov_b32 s{80+i}, 0')
    g('s_cmp_ge_u32 s3, 4')
    g('s_waitcnt lgkmcnt(0)')
    if diag:
        g('s_mov_b32 s72, s40')
        g('s_mov_b32 s73, s41')
        g(f's_mov_b32 s74, {STAMP + (1<<20)}')
        g('s_mov_b32 s75, 0x20000')
        g('s_mov_b32 s80, s78')
    g('s_cbranch_scc%d L_helper' % (0 if hfirst else 1))

    RB = 64
    def slot(k, s): return RB + 4*(16*k + s)
    g.c('stream wave: K/V region SRD s[44:47], V base s[48:49]')
    g('s_lshl_b32 s11, s9, 21')
    g('s_lshr_b32 s12, s9, 11')
    g('s_add_u32 s44, s18, s11')
    g('s_addc_u32 s45, s19, s12')
    g('s_mov_b32 s46, 0x200000')
    g('s_mov_b32 s47, 0x20000')
    g('s_add_u32 s48, s20, s11')
    g('s_addc_u32 s49, s21, s12')
    g('v_lshlrev_b32 v1, 4, v0')
    g('s_lshl_b32 s13, s8, 2')
    g('s_add_u32 s13, s13, s10')
    g('s_lshl_b32 s13, s13, 12')
    if rot:
        g(f's_mul_i32 s14, s9, {rot*65536}')
        g('s_add_u32 s13, s13, s14')
        g('s_and_b32 s13, s13, 0x1fffff')
    def issue_piece(k, pc):
        for i in range(4):
            r = slot(k, 4*pc+i)
            g(f'buffer_load_dwordx4 {vr(r)}, v1, s[44:47], s13 offen offset:{1024*i}{kvmod}')
        g('s_add_u32 s13, s13, 0x10000')
        g('s_and_b32 s13, s13, 0x1fffff')
    for k in range(NS):
        for pc in range(4):
            issue_piece(k, pc)
    g(f's_mov_b32 s14, {NS}')
    g('s_mov_b32 s50, 0xcccccccc')
    g('s_mov_b32 s51, 0xcccccccc')
    g('s_mov_b32 s52, 0xaaaaaaaa')
    g('s_mov_b32 s53, 0xaaaaaaaa')
    g('v_and_b32 v28, 15, v0')
    g('v_lshlrev_b32 v28, 5, v28')
    stamp(1)
    g('s_barrier')
    stamp(2)
    for u in range(4):
        g(f'ds_read_b128 {vr(32+8*u)}, v28 offset:{L_QP+512*u}')
        g(f'ds_read_b128 {vr(36+8*u)}, v28 offset:{L_QP+512*u+16}')
    g('s_waitcnt lgkmcnt(0)')
    for e in range(8):
        g(f'v_add_f32 v{32+e}, v{32+e}, v{40+e}')
        g(f'v_add_f32 v{48+e}, v{48+e}, v{56+e}')
    for e in range(8):
        g(f'v_add_f32 v{32+e}, v{32+e}, v{48+e}')
    for t in range(4):
        g(f'v_cvt_pk_bf16_f32 v{2+t}, v{32+2*t}, v{33+2*t}')

    def blk_head():
        g('s_cmp_eq_u32 s14, 8')
        g('s_cselect_b32 s44, s48, s44')
        g('s_cselect_b32 s45, s49, s45')
        g('s_cmp_ge_u32 s14, 16')
        g('s_cselect_b32 s46, 0, s46')
        g('s_add_u32 s14, s14, 1')
    DM = 'row_mask:0xf'
    def kblock(k):
        blk_head()
        for pc in range(4):
            g(f's_waitcnt vmcnt({R-4})')
            for t in range(4):
                for i in range(4):
                    r = slot(k, 4*pc+i) + t
                    if t == 0:
                        g(f'v_dot2_f32_bf16 v{18+i}, v{r}, v2, 0')
                    else:
                        g(f'v_dot2c_f32_bf16 v{18+i}, v{r}, v{2+t}')
            issue_piece(k, pc)
            g(f'v_add_f32_dpp v22, v18, v18 row_ror:8 {DM} bank_mask:0x3')
            g(f'v_add_f32_dpp v23, v20, v20 row_ror:8 {DM} bank_mask:0x3')
            g(f'v_add_f32_dpp v22, v19, v19 row_ror:8 {DM} bank_mask:0xc')
            g(f'v_add_f32_dpp v23, v21, v21 row_ror:8 {DM} bank_mask:0xc')
            g('s_nop 0')
            g(f'v_add_f32_dpp v{24+pc}, v22, v22 row_shl:4 {DM} bank_mask:0x5')
            g(f'v_add_f32_dpp v{24+pc}, v23, v23 row_shr:4 {DM} bank_mask:0xa')
        for e in range(7):
            g(f'v_mov_b32 v{10+e}, v{11+e}')
        for pc in range(4):
            g(f'v_add_f32_dpp v{24+pc}, v{24+pc}, v{24+pc} quad_perm:[2,3,0,1] {DM} bank_mask:0xf')
        g('v_cndmask_b32 v24, v24, v25, s[50:51]')
        g('v_cndmask_b32 v26, v26, v27, s[50:51]')
        g('s_nop 0')
        g(f'v_add_f32_dpp v24, v24, v24 quad_perm:[1,0,3,2] {DM} bank_mask:0xf')
        g(f'v_add_f32_dpp v26, v26, v26 quad_perm:[1,0,3,2] {DM} bank_mask:0xf')
        g('v_cndmask_b32 v17, v24, v26, s[52:53]')
    def pi(pc, i): return 8*(i & 1) + 4*(i >> 1) + 2*(pc & 1) + (pc >> 1)
    def vblock(k):
        blk_head()
        def build(a, pc, i):
            for t in range(4):
                g(f'v_and_b32_dpp v{a+t}, v10, v{6+t} row_newbcast:{pi(pc,i)} {DM} bank_mask:0xf')
        for pc in range(4):
            for i in range(4):
                build(36+4*i, pc, i)
            g(f's_waitcnt vmcnt({R-4})')
            g('s_nop 0')
            for i in range(4):
                r = slot(k, 4*pc+i)
                g(f'v_mfma_f32_16x16x32_bf16 v[32:35], {vr(36+4*i)}, {vr(r)}, v[32:35]')
            issue_piece(k, pc)
        for e in range(7):
            g(f'v_mov_b32 v{10+e}, v{11+e}')

    g.label('L_kloop')
    for k in range(NS):
        kblock(k)
        if k == (7 % NS):
            g(f's_cmp_eq_u32 s14, {8+NS}')
            if k == NS-1:
                g('s_cbranch_scc0 L_kloop')
            else:
                g('s_cbranch_scc1 L_soft')
    if (7 % NS) != NS-1:
        g('s_branch L_kloop')
    g.label('L_soft')
    stamp(3)
    scale = 128 ** -0.5
    log2e = math.log2(math.e)
    if mimic:
        g(f's_mov_b32 s54, 0x{f2u(scale):08x}')
        g(f's_mov_b32 s55, 0x{f2u(log2e):08x}')
        for e in range(8):
            g(f'v_cvt_pk_bf16_f32 v{10+e}, 0, v{10+e}')
        for e in range(8):
            g(f'v_mul_f32 v{10+e}, s54, v{10+e}')
        for e in range(8):
            g(f'v_cvt_pk_bf16_f32 v{10+e}, 0, v{10+e}')
        for e in range(8):
            g(f'v_mul_f32 v{10+e}, s55, v{10+e}')
    else:
        g(f's_mov_b32 s55, 0x{f2u(scale*log2e):08x}')
        for e in range(8):
            g(f'v_mul_f32 v{10+e}, s55, v{10+e}')
    def allreduce(op, r, t):
        g('s_nop 1')
        for m in ('row_ror:8', 'row_ror:4', 'row_ror:2', 'row_ror:1'):
            g(f'{op}_dpp v{r}, v{r}, v{r} {m} {DM} bank_mask:0xf')
            g('s_nop 1')
        for sw in ('v_permlane16_swap_b32', 'v_permlane32_swap_b32'):
            g(f'v_mov_b32 v{t}, v{r}')
            g('s_nop 1')
            g(f'{sw} v{r}, v{t}')
            g('s_nop 1')
            g(f'{op} v{r}, v{r}, v{t}')
    g('v_max3_f32 v18, v10, v11, v12')
    g('v_max3_f32 v19, v13, v14, v15')
    g('v_max3_f32 v18, v18, v16, v17')
    g('v_max_f32 v18, v18, v19')
    allreduce('v_max_f32', 18, 20)
    for e in range(8):
        g(f'v_sub_f32 v{10+e}, v{10+e}, v18')
    for e in range(8):
        g(f'v_exp_f32 v{10+e}, v{10+e}')
    g('s_nop 0')
    g('v_add_f32 v19, v10, v11')
    g('v_add_f32 v20, v12, v13')
    g('v_add_f32 v21, v14, v15')
    g('v_add_f32 v22, v16, v17')
    g('v_add_f32 v19, v19, v20')
    g('v_add_f32 v21, v21, v22')
    g('v_add_f32 v19, v19, v21')
    allreduce('v_add_f32', 19, 20)
    for e in range(8):
        g(f'v_cvt_pk_bf16_f32 v{10+e}, v{10+e}, v{10+e}')
    g('v_min_u32 v18, -2, v18')
    g('v_min_u32 v19, -2, v19')
    g('s_lshl_b32 s15, s10, 3')
    g('v_mov_b32 v20, s15')
    g(f'ds_write_b64 v20, v[18:19] offset:{L_MLW}')
    for r in range(4):
        g(f'v_mov_b32 v{32+r}, 0')
    g('v_and_b32 v28, 15, v0')
    g('v_lshlrev_b32 v28, 5, v28')
    g('v_and_b32 v29, 16, v0')
    g('v_add_u32 v28, v28, v29')
    g('s_lshl_b32 s15, s10, 9')
    g('v_add_u32 v28, s15, v28')
    ent = 8 % NS
    if ent != 0:
        g(f's_branch L_v{ent}')
    g.label('L_vloop')
    for k in range(NS):
        if k: g.label(f'L_v{k}')
        vblock(k)
        if k == (15 % NS):
            g(f's_cmp_eq_u32 s14, {16+NS}')
            if k == NS-1:
                g('s_cbranch_scc0 L_vloop')
            else:
                g('s_cbranch_scc1 L_vdone')
    if (15 % NS) != NS-1:
        g('s_branch L_vloop')
    g.label('L_vdone')
    g('s_nop 1')
    g(f'ds_write_b128 v28, v[32:35] offset:{L_OP}')
    g('s_waitcnt lgkmcnt(0)')
    stamp(4)
    g('s_barrier')
    stamp_flush()
    g('s_endpgm')

    g.label('L_helper')
    g.c('SRDs: x s[44:47], wq s[48:51], ws s[52:55], wo s[56:59], dbg s[60:63]')
    g('s_mov_b32 s44, s16'); g('s_mov_b32 s45, s17'); g('s_movk_i32 s46, 2560'); g('s_mov_b32 s47, 0x20000')
    g('s_lshl_b32 s11, s6, 8')
    g('s_add_u32 s48, s22, s11'); g('s_addc_u32 s49, s23, 0')
    g(f's_sub_u32 s50, {640*8192}, s11'); g('s_mov_b32 s51, 0x20000')
    g('s_mov_b32 s52, s40'); g('s_mov_b32 s53, s41'); g(f's_mov_b32 s54, {WS_USED}'); g('s_mov_b32 s55, 0x20000')
    g(f's_mul_i32 s11, s6, {128*1280}')
    g('s_add_u32 s56, s24, s11'); g('s_addc_u32 s57, s25, 0')
    g(f's_mov_b32 s58, {128*1280}'); g('s_mov_b32 s59, 0x20000')
    g('s_mov_b32 s60, s38'); g('s_mov_b32 s61, s39'); g('s_movk_i32 s62, 256'); g('s_mov_b32 s63, 0x20000')
    g('v_lshlrev_b32 v1, 2, v0')
    for b in range(2):
        for k in range(5):
            g(f'buffer_load_dword v{10+5*b+k}, v1, s[44:47], 0 offen offset:{1280*b+256*k}')
    g('v_lshrrev_b32 v3, 4, v0')
    g('v_and_b32 v4, 15, v0')
    g('v_mul_u32_u24 v2, 40, v3')
    g('s_mul_i32 s11, s10, 160')
    g('v_add_u32 v2, s11, v2')
    g('v_lshlrev_b32 v5, 2, v2')
    g('v_lshlrev_b32 v2, 13, v2')
    g('v_lshl_add_u32 v2, v4, 4, v2')
    QB = 96
    g('s_mov_b32 s12, 0')
    for i in range(QCAP):
        g(f'buffer_load_dwordx4 {vr(QB+4*i)}, v2, s[48:51], s12 offen{wnt}')
        g('s_add_u32 s12, s12, 0x2000')
    g('s_mul_i32 s14, s4, 27')
    g('s_add_u32 s14, s14, s5')
    g('s_mul_i32 s15, s4, 5')
    g('s_add_u32 s15, s15, s5')
    g('s_sub_u32 s15, s15, 27')
    for r in range(4):
        g(f'v_mov_b32 v{20+r}, -1')
    g('s_lshl_b32 s11, s10, 6')
    g('v_add_u32 v25, s11, v0')
    g('v_lshrrev_b32 v24, 3, v25')
    g('s_mul_i32 s11, s7, 20')
    g('v_add_u32 v24, s11, v24')
    g('v_lshlrev_b32 v24, 14, v24')
    g('v_and_b32 v26, 7, v25')
    g('v_lshl_add_u32 v24, v26, 4, v24')
    g('s_lshl_b32 s11, s6, 2')
    g('s_add_u32 s11, s11, s8')
    g('s_lshl_b32 s11, s11, 7')
    g('v_add_u32 v24, s11, v24')
    g('v_cmp_gt_u32 vcc, 160, v25')
    g('v_mov_b32 v26, 0x7ffffff0')
    g('s_nop 0')
    g('v_cndmask_b32 v24, v26, v24, vcc')
    g('buffer_store_dwordx4 v[20:23], v24, s[52:55], 0 offen sc1')
    g('v_lshrrev_b32 v26, 1, v3')
    g('v_mul_u32_u24 v26, 20, v26')
    g('v_lshrrev_b32 v27, 2, v4')
    g('v_add_u32 v26, v26, v27')
    g(f'v_mul_u32_u24 v26, {216*128}, v26')
    g('v_and_b32 v27, 3, v4')
    g('v_lshlrev_b32 v27, 5, v27')
    g('v_add_u32 v26, v26, v27')
    g('v_and_b32 v27, 16, v0')
    g('v_add_u32 v27, v26, v27')
    g('s_lshl_b32 s11, s14, 7')
    g(f's_add_u32 s11, s11, {FIN}')
    g('v_add_u32 v27, s11, v27')
    g('s_cmp_lt_u32 s5, 27')
    g('s_cselect_b32 s64, 1, 0')
    g('s_cmp_eq_u32 s10, 3')
    g('s_cselect_b32 s64, s64, 0')
    g('s_cmp_ge_u32 s5, 27')
    g('s_cselect_b32 s65, 1, 0')
    g('s_cmp_eq_u32 s10, 1')
    g('s_cselect_b32 s65, s65, 0')
    g('s_lshl_b32 s66, s9, 7')
    g(f's_add_u32 s66, s66, {MLIN}')
    g(f's_waitcnt vmcnt({QCAP+1})')
    g('s_cmp_eq_u32 s64, 0')
    g('s_cbranch_scc1 L_noclrf')
    g('s_mov_b32 s11, 0')
    for blk in range(5):
        g(f'buffer_store_dwordx4 v[20:23], v27, s[52:55], s11 offen sc1')
        if blk < 4: g(f's_add_u32 s11, s11, {4*216*128}')
    g.label('L_noclrf')
    g('s_cmp_lg_u32 s10, 0')
    g('s_cbranch_scc1 L_noclrm')
    g('s_lshl_b32 s11, s8, 3')
    g('v_mov_b32 v26, s11')
    g('s_mov_b64 exec, 1')
    g('buffer_store_dwordx2 v[20:21], v26, s[52:55], s66 offen sc1')
    g('s_mov_b64 exec, -1')
    g('v_lshlrev_b32 v26, 2, v0')
    g('v_and_b32 v26, 31, v26')
    g(f'ds_write_b32 v26, v20 offset:{L_MLW}')
    g.label('L_noclrm')
    stamp(1)
    for b in range(2):
        for k in range(5):
            s = 10+5*b+k; d = 30+10*b+2*k
            g(f'v_lshlrev_b32 v{d}, 16, v{s}')
            g(f'v_and_b32 v{d+1}, 0xffff0000, v{s}')
    def allreduce2(op, ra, rb, ta, tb):
        g('s_nop 0')
        for m in ('row_ror:8', 'row_ror:4', 'row_ror:2', 'row_ror:1'):
            g(f'{op}_dpp v{ra}, v{ra}, v{ra} {m} {DM} bank_mask:0xf')
            g(f'{op}_dpp v{rb}, v{rb}, v{rb} {m} {DM} bank_mask:0xf')
            g('s_nop 0')
        for sw in ('v_permlane16_swap_b32', 'v_permlane32_swap_b32'):
            g(f'v_mov_b32 v{ta}, v{ra}')
            g(f'v_mov_b32 v{tb}, v{rb}')
            g('s_nop 0')
            g(f'{sw} v{ra}, v{ta}')
            g(f'{sw} v{rb}, v{tb}')
            g('s_nop 0')
            g(f'{op} v{ra}, v{ra}, v{ta}')
            g(f'{op} v{rb}, v{rb}, v{tb}')
    for b in range(2):
        d = 30+10*b
        g(f'v_add_f32 v{50+b}, v{d}, v{d+1}')
        for e in range(2, 10):
            g(f'v_add_f32 v{50+b}, v{50+b}, v{d+e}')
    allreduce2('v_add_f32', 50, 51, 52, 53)
    g(f's_mov_b32 s11, 0x{f2u(1.0/640):08x}')
    g('v_mul_f32 v50, s11, v50')
    g('v_mul_f32 v51, s11, v51')
    for b in range(2):
        d = 30+10*b
        for e in range(10):
            g(f'v_sub_f32 v54, v{d+e}, v{50+b}')
            if e == 0: g(f'v_mul_f32 v{56+b}, v54, v54')
            else: g(f'v_fmac_f32 v{56+b}, v54, v54')
    allreduce2('v_add_f32', 56, 57, 52, 53)
    g(f's_mov_b32 s13, 0x{f2u(1e-5):08x}')
    for b in range(2):
        g(f'v_mul_f32 v{56+b}, s11, v{56+b}')
        g(f'v_cvt_pk_bf16_f32 v{56+b}, 0, v{56+b}')
        g(f'v_add_f32 v{56+b}, s13, v{56+b}')
        g(f'v_cvt_pk_bf16_f32 v{56+b}, 0, v{56+b}')
        g(f'v_sqrt_f32 v{56+b}, v{56+b}')
        g(f'v_cvt_pk_bf16_f32 v{50+b}, 0, v{50+b}')
        g(f'v_cvt_pk_bf16_f32 v{56+b}, 0, v{56+b}')
        g(f'v_rcp_f32 v{58+b}, v{56+b}')
    for b in range(2):
        d = 30+10*b
        for e in range(10):
            g(f'v_sub_f32 v{d+e}, v{d+e}, v{50+b}')
        for e in range(10):
            g(f'v_cvt_pk_bf16_f32 v{d+e}, 0, v{d+e}')
        for e in range(10):
            g(f'v_mul_f32 v54, v{d+e}, v{58+b}')
            g(f'v_fma_f32 v55, -v54, v{56+b}, v{d+e}')
            g(f'v_fma_f32 v{d+e}, v55, v{58+b}, v54')
    g('v_lshlrev_b32 v26, 3, v0')
    for b in range(2):
        for k in range(5):
            d = 30+10*b+2*k
            g(f'v_cvt_pk_bf16_f32 v{10+5*b+k}, v{d}, v{d+1}')
            g(f'v_cvt_pk_bf16_f32 v{d}, v{d}, v{d}')
            g(f'v_cvt_pk_bf16_f32 v{d+1}, v{d+1}, v{d+1}')
            g(f'ds_write_b64 v26, v[{d}:{d+1}] offset:{L_XN+2560*b+512*k}')
    g('s_mul_i32 s11, s7, 2560')
    g('v_add_u32 v5, s11, v5')
    for r in range(4):
        g(f'v_mov_b32 v{32+r}, 0')
    g('s_waitcnt lgkmcnt(0)')
    stamp(2)
    nit = 40 // QCAP
    assert QCAP % 4 == 0 and 40 % QCAP == 0
    g('s_waitcnt vmcnt(0)')
    g(f's_mov_b32 s13, {nit}')
    g.label('L_qloop')
    XB = 44
    for i in range(QCAP//4):
        g(f'ds_read_b128 {vr(XB+4*i)}, v5 offset:{L_XN+16*i}')
    g(f'v_add_u32 v5, {4*QCAP}, v5')
    g('s_sub_u32 s13, s13, 1')
    g('s_cmp_eq_u32 s13, 0')
    g('s_cselect_b32 s50, 0, s50')
    g('s_waitcnt lgkmcnt(0)')
    for i in range(QCAP):
        a = 36 + 4*(i & 1)
        for t in range(4):
            g(f'v_and_b32 v{a+t}, v{XB+i}, v{6+t}')
        g(f's_waitcnt vmcnt({QCAP-1})')
        g('s_nop 0')
        g(f'v_mfma_f32_16x16x32_bf16 v[32:35], {vr(a)}, {vr(QB+4*i)}, v[32:35]')
        g(f'buffer_load_dwordx4 {vr(QB+4*i)}, v2, s[48:51], s12 offen{wnt}')
        g('s_add_u32 s12, s12, 0x2000')
    g('s_cmp_lg_u32 s13, 0')
    g('s_cbranch_scc1 L_qloop')
    g('v_lshlrev_b32 v28, 5, v4')
    g('v_and_b32 v29, 16, v0')
    g('v_add_u32 v28, v28, v29')
    g('s_lshl_b32 s11, s10, 9')
    g('v_add_u32 v29, s11, v28')
    g('s_nop 3')
    g(f'ds_write_b128 v29, v[32:35] offset:{L_QP}')
    g('s_waitcnt vmcnt(0) lgkmcnt(0)')
    stamp(3)
    g('s_barrier')
    stamp(4)
    g('s_cmp_lg_u32 s10, 0')
    g('s_cbranch_scc1 L_noclr')
    g('v_mov_b32 v20, 1')
    g('v_mov_b32 v21, 0')
    g('s_mov_b64 exec, 1')
    g('buffer_atomic_add v20, v21, s[60:63], 0 offen')
    g('s_mov_b64 exec, -1')
    g.label('L_noclr')
    g('s_cmp_eq_u32 s64, 0')
    g('s_cbranch_scc1 L_noffn')
    g.c('SRDs: w1 s[68:71], w2 s[44:47], b1 s[48:51]')
    g('s_mov_b32 s68, s28'); g('s_mov_b32 s69, s29'); g(f's_mov_b32 s70, {640*3456}'); g('s_mov_b32 s71, 0x20000')
    g('s_mov_b32 s44, s32'); g('s_mov_b32 s45, s33'); g(f's_mov_b32 s46, {1728*1280}'); g('s_mov_b32 s47, 0x20000')
    g('s_mov_b32 s48, s30'); g('s_mov_b32 s49, s31'); g('s_movk_i32 s50, 3456'); g('s_mov_b32 s51, 0x20000')
    g(f'v_mul_u32_u24 v20, {2*3456}, v0')
    g('s_lshl_b32 s11, s14, 4')
    W1B = 96
    for k in range(5):
        g(f'buffer_load_dwordx4 {vr(W1B+8*k)}, v20, s[68:71], s11 offen{wnt}')
        g(f'buffer_load_dwordx4 {vr(W1B+8*k+4)}, v20, s[68:71], s11 offen offset:3456{wnt}')
        if k < 4: g(f's_add_u32 s11, s11, {128*3456}')
    g('v_lshlrev_b32 v21, 1, v3')
    g('s_lshl_b32 s11, s14, 4')
    g('buffer_load_ushort v30, v21, s[48:51], s11 offen')
    g('buffer_load_ushort v31, v21, s[48:51], s11 offen offset:8')
    W2B = 136
    g('v_mul_u32_u24 v21, 1280, v3')
    g('v_lshl_add_u32 v21, v4, 4, v21')
    g(f's_mul_i32 s11, s14, {8*1280}')
    for rg in range(2):
        for blk in range(5):
            g(f'buffer_load_dwordx4 {vr(W2B+4*(5*rg+blk))}, v21, s[44:47], s11 offen offset:{256*blk} nt')
        if rg == 0: g(f's_add_u32 s11, s11, {4*1280}')
    g('s_mov_b32 s12, 0x05040100')
    g('s_mov_b32 s13, 0x07060302')
    AC = 44
    for e in range(16):
        g(f'v_mov_b32 v{AC+e}, 0')
    for k in range(5):
        g(f's_waitcnt vmcnt({12 + 2*(4-k)})')
        A_, B_ = W1B+8*k, W1B+8*k+4
        for t in range(4):
            g(f'v_perm_b32 v{60+2*t}, v{B_+t}, v{A_+t}, s12')
            g(f'v_perm_b32 v{61+2*t}, v{B_+t}, v{A_+t}, s13')
        for b in range(2):
            for f in range(8):
                g(f'v_dot2c_f32_bf16 v{AC+8*b+f}, v{60+f}, v{10+5*b+k}')
    g('s_nop 2')
    for b in range(2):
        for rg in range(2):
            for g0 in range(2):
                g(f'v_permlane32_swap_b32 v{AC+8*b+4*rg+g0}, v{AC+8*b+4*rg+2+g0}')
    g('s_nop 1')
    for b in range(2):
        for rg in range(2):
            for g0 in range(2):
                a = AC+8*b+4*rg+g0
                g(f'v_add_f32 v{a}, v{a}, v{a+2}')
    g('s_nop 1')
    for b in range(2):
        for rg in range(2):
            a = AC+8*b+4*rg
            g(f'v_permlane16_swap_b32 v{a}, v{a+1}')
    g('s_nop 1')
    for b in range(2):
        for rg in range(2):
            a = AC+8*b+4*rg
            g(f'v_add_f32 v{a}, v{a}, v{a+1}')
    g('s_nop 1')
    for rg in range(2):
        g(f'v_add_f32_dpp v{60+rg}, v{AC+4*rg}, v{AC+4*rg} row_ror:8 {DM} bank_mask:0x3')
        g(f'v_add_f32_dpp v{60+rg}, v{AC+8+4*rg}, v{AC+8+4*rg} row_ror:8 {DM} bank_mask:0xc')
    for m in ('row_half_mirror', 'quad_perm:[2,3,0,1]', 'quad_perm:[1,0,3,2]'):
        g('s_nop 1')
        for rg in range(2):
            g(f'v_add_f32_dpp v{60+rg}, v{60+rg}, v{60+rg} {m} {DM} bank_mask:0xf')
    g('s_waitcnt vmcnt(10)')
    for rg in range(2):
        g(f'v_cvt_pk_bf16_f32 v{60+rg}, 0, v{60+rg}')
        g(f'v_lshlrev_b32 v{30+rg}, 16, v{30+rg}')
        g(f'v_add_f32 v{60+rg}, v{60+rg}, v{30+rg}')
        g(f'v_cvt_pk_bf16_f32 v{60+rg}, 0, v{60+rg}')
        g(f'v_cmp_lt_f32 vcc, 0, v{60+rg}')
        g('s_nop 1')
        g(f'v_cndmask_b32 v{60+rg}, 0, v{60+rg}, vcc')
        g(f'v_mul_f32 v{60+rg}, v{60+rg}, v{60+rg}')
        g(f'v_cvt_pk_bf16_f32 v{60+rg}, v{60+rg}, v{60+rg}')
        for t in range(4):
            g(f'v_and_b32 v{36+4*rg+t}, v{60+rg}, v{6+t}')
    g('s_waitcnt vmcnt(0)')
    g('s_nop 0')
    FD = 64
    for blk in range(5):
        g(f'v_mfma_f32_16x16x32_bf16 {vr(FD+4*blk)}, v[36:39], {vr(W2B+4*blk)}, 0')
    for blk in range(5):
        g(f'v_mfma_f32_16x16x32_bf16 {vr(FD+4*blk)}, v[40:43], {vr(W2B+4*(5+blk))}, {vr(FD+4*blk)}')
    g('s_nop 7')
    g('s_mov_b32 s11, 0')
    for blk in range(5):
        for r in range(4):
            g(f'v_min_u32 v{FD+4*blk+r}, -2, v{FD+4*blk+r}')
        g(f'buffer_store_dwordx4 {vr(FD+4*blk)}, v27, s[52:55], s11 offen sc1')
        if blk < 4: g(f's_add_u32 s11, s11, {4*216*128}')
    g.label('L_noffn')
    stamp(5)
    WOB = 96
    g('v_mul_u32_u24 v20, %d, v3' % (8*1280))
    g('v_lshl_add_u32 v20, v4, 4, v20')
    g(f's_mul_i32 s11, s10, {32*1280}')
    n = 0
    for rg in range(8):
        for blk in range(5):
            if n >= WCAP:
                g(f's_waitcnt vmcnt({WCAP-1})')
            g(f'buffer_load_dwordx4 {vr(WOB+4*(5*rg+blk))}, v20, s[56:59], s11 offen offset:{256*blk}{wnt}')
            n += 1
        if rg < 7: g('s_add_u32 s11, s11, 1280')
    g('s_waitcnt vmcnt(0)')
    stamp(6)
    g('s_cmp_eq_u32 s10, 0')
    g('s_cselect_b32 s11, 1, s65')
    g('s_cmp_eq_u32 s11, 0')
    g('s_cbranch_scc1 L_bar2')
    g('v_mov_b32 v21, 0')
    g(f's_mov_b32 s12, {spin}')
    g.label('L_clrpoll')
    g('buffer_load_dword v20, v21, s[60:63], 0 offen sc1')
    g('s_waitcnt vmcnt(0)')
    g('v_readfirstlane_b32 s11, v20')
    g('s_sub_u32 s12, s12, 1')
    g('s_cbranch_scc1 L_clrok')
    g('s_cmp_ge_u32 s11, 256')
    g('s_cbranch_scc1 L_clrok')
    g('s_sleep 16')
    g('s_branch L_clrpoll')
    g.label('L_clrok')
    g('s_cmp_lg_u32 s10, 0')
    g('s_cbranch_scc1 L_cons_g')
    g('v_and_b32 v21, 3, v0')
    g('v_lshlrev_b32 v21, 3, v21')
    g(f's_mov_b32 s12, {spin}')
    g.label('L_mlw')
    g(f'ds_read_b64 v[30:31], v21 offset:{L_MLW}')
    g('s_waitcnt lgkmcnt(0)')
    g('v_max_u32 v22, v30, v31')
    g('v_cmp_eq_u32 vcc, -1, v22')
    g('s_sub_u32 s12, s12, 1')
    g('s_cbranch_scc1 L_mlwok')
    g('s_cbranch_vccz L_mlwok')
    g('s_sleep 8')
    g('s_branch L_mlw')
    g.label('L_mlwok')
    def quadred(op, r):
        g('s_nop 1')
        g(f'{op}_dpp v{r}, v{r}, v{r} quad_perm:[2,3,0,1] {DM} bank_mask:0xf')
        g('s_nop 1')
        g(f'{op}_dpp v{r}, v{r}, v{r} quad_perm:[1,0,3,2] {DM} bank_mask:0xf')
    g('v_mov_b32 v32, v30')
    quadred('v_max_f32', 32)
    g('v_sub_f32 v33, v30, v32')
    g('v_exp_f32 v33, v33')
    g('s_nop 0')
    g('v_mul_f32 v33, v33, v31')
    quadred('v_add_f32', 33)
    g('v_min_u32 v32, -2, v32')
    g('v_min_u32 v33, -2, v33')
    g('s_lshl_b32 s11, s8, 3')
    g('v_mov_b32 v22, s11')
    g('s_mov_b64 exec, 1')
    g('buffer_store_dwordx2 v[32:33], v22, s[52:55], s66 offen sc1')
    g('s_mov_b64 exec, -1')
    g(f's_mov_b32 s12, {spin}')
    g.label('L_mlg')
    g('buffer_load_dwordx2 v[34:35], v21, s[52:55], s66 offen sc1')
    g('s_waitcnt vmcnt(0)')
    g('v_max_u32 v22, v34, v35')
    g('v_cmp_eq_u32 vcc, -1, v22')
    g('s_sub_u32 s12, s12, 1')
    g('s_cbranch_scc1 L_mlgok')
    g('s_cbranch_vccz L_mlgok')
    g('s_sleep 16')
    g('s_branch L_mlg')
    g.label('L_mlgok')
    g('v_mov_b32 v32, v34')
    quadred('v_max_f32', 32)
    g('v_sub_f32 v33, v34, v32')
    g('v_exp_f32 v33, v33')
    g('s_nop 0')
    g('v_mul_f32 v33, v33, v35')
    quadred('v_add_f32', 33)
    g('v_sub_f32 v30, v30, v32')
    g('v_exp_f32 v30, v30')
    g('v_rcp_f32 v33, v33')
    g('s_nop 0')
    g('v_mul_f32 v30, v30, v33')
    g('v_lshrrev_b32 v21, 1, v21')
    g(f'ds_write_b32 v21, v30 offset:{L_FAC}')
    g('s_waitcnt lgkmcnt(0)')
    g('s_branch L_bar2')
    g.label('L_cons_g')
    g.c('SRDs: x s[44:47] (still), b2 s[48:51], out s[68:71]')
    g('s_mov_b32 s48, s34'); g('s_mov_b32 s49, s35'); g('s_movk_i32 s50, 1280'); g('s_mov_b32 s51, 0x20000')
    g('v_and_b32 v23, 7, v0')
    g('v_lshl_add_u32 v23, v23, 2, v3')
    g('s_lshl_b32 s11, s15, 5')
    g('v_add_u32 v23, s11, v23')
    g('v_lshlrev_b32 v23, 1, v23')
    g('buffer_load_ushort v90, v23, s[44:47], 0 offen')
    g('s_cmp_ge_u32 s15, 20')
    g('s_cselect_b32 s11, 1280, 0')
    g('v_subrev_u32 v22, s11, v23')
    g('buffer_load_ushort v91, v22, s[48:51], 0 offen')
    g('v_lshlrev_b32 v22, 4, v0')
    g(f's_mul_i32 s13, s15, {216*128}')
    g(f's_add_u32 s13, s13, {FIN}')
    for r in range(4):
        g(f'v_mov_b32 v{32+r}, 0')
    g('s_mov_b32 s67, 3')
    g(f's_mov_b32 s12, {spin}')
    g.label('L_fpoll')
    FB = 44
    for i in range(9):
        if i in (4, 8):
            g(f's_add_u32 s11, s13, {1024*i}')
        so = 's13' if i < 4 else 's11'
        g(f'buffer_load_dwordx4 {vr(FB+4*i)}, v22, s[52:55], {so} offen offset:{1024*(i%4)} sc1')
    g('s_waitcnt vmcnt(0)')
    g(f'v_max3_u32 v20, v{FB}, v{FB+1}, v{FB+2}')
    for e in range(3, 35, 2):
        g(f'v_max3_u32 v20, v20, v{FB+e}, v{FB+e+1}')
    g(f'v_max_u32 v20, v20, v{FB+35}')
    g('v_cmp_eq_u32 vcc, -1, v20')
    g('s_sub_u32 s12, s12, 1')
    g('s_cbranch_scc1 L_fok')
    g('s_cbranch_vccz L_fok')
    g('s_sleep 32')
    g('s_branch L_fpoll')
    g.label('L_fok')
    for i in range(9):
        for r in range(4):
            g(f'v_add_f32 v{32+r}, v{32+r}, v{FB+4*i+r}')
    g(f's_add_u32 s13, s13, {9*1024}')
    g('s_sub_u32 s67, s67, 1')
    g('s_cmp_lg_u32 s67, 0')
    g('s_cbranch_scc1 L_fpoll')
    def red8(a):
        g('s_nop 1')
        for r in range(4):
            g(f'v_add_f32_dpp v{a+r}, v{a+r}, v{a+r} row_ror:8 {DM} bank_mask:0xf')
        g('s_nop 0')
        g(f'v_permlane16_swap_b32 v{a}, v{a+1}')
        g(f'v_permlane16_swap_b32 v{a+2}, v{a+3}')
        g('s_nop 0')
        g(f'v_add_f32 v{a}, v{a}, v{a+1}')
        g(f'v_add_f32 v{a+2}, v{a+2}, v{a+3}')
        g('s_nop 1')
        g(f'v_permlane32_swap_b32 v{a}, v{a+2}')
        g('s_nop 1')
        g(f'v_add_f32 v{a}, v{a}, v{a+2}')
    red8(32)
    g('v_cvt_pk_bf16_f32 v32, 0, v32')
    g('v_lshlrev_b32 v91, 16, v91')
    g('v_lshlrev_b32 v90, 16, v90')
    g('v_add_f32 v32, v32, v91')
    g('v_cvt_pk_bf16_f32 v32, 0, v32')
    g(f'v_mul_f32 v33, 0x{f2u(-log2e):08x}, v32')
    g('v_exp_f32 v33, v33')
    g('s_nop 0')
    g('v_add_f32 v33, 1.0, v33')
    g('v_rcp_f32 v33, v33')
    g('s_nop 0')
    g('v_mul_f32 v32, v32, v33')
    g('v_cvt_pk_bf16_f32 v91, 0, v32')
    g.label('L_bar2')
    g('s_mov_b32 s68, s36'); g('s_mov_b32 s69, s37'); g('s_movk_i32 s70, 2560'); g('s_mov_b32 s71, 0x20000')
    g('s_lshl_b32 s11, s10, 7')
    g('v_lshl_add_u32 v21, v3, 5, s11')
    g('v_mov_b32 v20, 0')
    g(f's_mul_i32 s11, s10, {640*4}')
    g('v_add_u32 v29, s11, v28')
    g('v_lshlrev_b32 v26, 4, v25')
    stamp(7)
    g('s_barrier')
    stamp(8)
    g(f'ds_read_b128 v[84:87], v20 offset:{L_FAC}')
    for u in range(4):
        g(f'ds_read_b128 {vr(44+8*u)}, v21 offset:{L_OP+512*u}')
        g(f'ds_read_b128 {vr(48+8*u)}, v21 offset:{L_OP+512*u+16}')
    g('s_waitcnt lgkmcnt(6)')
    for e in range(8):
        g(f'v_mul_f32 v{44+e}, v84, v{44+e}')
    for u in range(1, 4):
        g(f's_waitcnt lgkmcnt({6-2*u})')
        for e in range(8):
            g(f'v_fmac_f32 v{44+e}, v{84+u}, v{44+8*u+e}')
    for e in range(8):
        g(f'v_cvt_pk_bf16_f32 v{44+e}, v{44+e}, v{44+e}')
    YD = 64
    def buildA(a, rg):
        for t in range(4):
            g(f'v_and_b32 v{a+t}, v{44+rg}, v{6+t}')
    buildA(36, 0)
    for rg in range(8):
        a = 36 + 4*(rg & 1)
        if rg < 7:
            buildA(36 + 4*((rg+1) & 1), rg+1)
        for blk in range(5):
            c_ = '0' if rg == 0 else vr(YD+4*blk)
            g(f'v_mfma_f32_16x16x32_bf16 {vr(YD+4*blk)}, {vr(a)}, {vr(WOB+4*(5*rg+blk))}, {c_}')
    g('s_nop 3')
    for blk in range(5):
        g(f'ds_write_b128 v29, {vr(YD+4*blk)} offset:{L_YP+512*blk}')
        if blk == 0: g('s_nop 0')
    g('s_waitcnt lgkmcnt(0)')
    g('s_barrier')
    for u in range(4):
        g(f'ds_read_b128 {vr(44+4*u)}, v26 offset:{L_YP+2560*u}')
    g('s_waitcnt lgkmcnt(2)')
    for r in range(4):
        g(f'v_add_f32 v{44+r}, v{44+r}, v{48+r}')
    g('s_waitcnt lgkmcnt(0)')
    for r in range(4):
        g(f'v_add_f32 v{52+r}, v{52+r}, v{56+r}')
    for r in range(4):
        g(f'v_add_f32 v{44+r}, v{44+r}, v{52+r}')
    for r in range(4):
        g(f'v_min_u32 v{44+r}, -2, v{44+r}')
    g('buffer_store_dwordx4 v[44:47], v24, s[52:55], 0 offen sc1')
    stamp(9)
    g('s_cmp_eq_u32 s65, 0')
    g('s_cbranch_scc1 L_hend')
    g('s_lshl_b32 s13, s15, 14')
    g(f's_mov_b32 s12, {spin}')
    g.label('L_ypoll')
    YB = 96
    for i in range(16):
        if i and i % 4 == 0:
            g(f's_add_u32 s11, s13, {1024*i}')
        so = 's13' if i < 4 else 's11'
        g(f'buffer_load_dwordx4 {vr(YB+4*i)}, v22, s[52:55], {so} offen offset:{1024*(i%4)} sc1')
    for i in range(16):
        g(f's_waitcnt vmcnt({15-i})')
        r = YB+4*i
        if i == 0:
            g(f'v_max3_u32 v20, v{r}, v{r+1}, v{r+2}')
            g(f'v_max_u32 v20, v20, v{r+3}')
        else:
            g(f'v_max3_u32 v20, v20, v{r}, v{r+1}')
            g(f'v_max3_u32 v20, v20, v{r+2}, v{r+3}')
            for e in range(4):
                g(f'v_add_f32 v{YB+e}, v{YB+e}, v{r+e}')
    g('v_cmp_eq_u32 vcc, -1, v20')
    g('s_sub_u32 s12, s12, 1')
    g('s_cbranch_scc1 L_yok')
    g('s_cbranch_vccnz L_ypoll')
    g.label('L_yok')
    red8(YB)
    g(f'v_cvt_pk_bf16_f32 v32, 0, v{YB}')
    g('v_mul_f32 v32, v32, v91')
    g('v_cvt_pk_bf16_f32 v32, 0, v32')
    g('v_add_f32 v32, v32, v90')
    g('v_cvt_pk_bf16_f32 v32, v32, v32')
    g('buffer_store_short v32, v23, s[68:71], 0 offen')
    stamp(10)
    g.label('L_hend')
    stamp_flush()
    g.label('L_exit')
    g('s_endpgm')

    out = HEADER
    out += f"; @launch grid=(256,1,1) block=(512,1,1) lds={LDS_SZ}\n"
    out += '.amdgcn_target "amdgcn-amd-amdhsa--gfx950"\n.text\n'
    out += f'.globl {NAME}_kernel\n.p2align 8\n.type {NAME}_kernel,@function\n{NAME}_kernel:\n'
    out += '\n'.join(g.L) + '\n'
    out += f""".section .rodata,"a"
.p2align 6
.amdhsa_kernel {NAME}_kernel
  .amdhsa_next_free_vgpr 256
  .amdhsa_next_free_sgpr 96
  .amdhsa_accum_offset 256
  .amdhsa_group_segment_fixed_size 0
  .amdhsa_kernarg_size 104
  .amdhsa_user_sgpr_count 2
  .amdhsa_user_sgpr_kernarg_segment_ptr 1
  .amdhsa_system_sgpr_workgroup_id_x 1
  .amdhsa_float_denorm_mode_32 3
.end_amdhsa_kernel
"""
    return out

if __name__ == '__main__':
    kw = eval('dict(' + (sys.argv[2] if len(sys.argv) > 2 else '') + ')')
    open(sys.argv[1], 'w').write(gen(**kw))
```

```python
import sys, math, struct

NAME = "recurrent_scan__mha_block_cached__dense_activation_squared_relu__decode"

HEADER = """; Kernarg layout for this problem (104 bytes, ptrs only, base s[0:1]):
"""

def f2u(x):
    return struct.unpack('<I', struct.pack('<f', x))[0]

YIN = 0
YIN_SZ = 2*20*128*128
FIN = YIN + YIN_SZ
FIN_SZ = 2*20*216*128
MLIN = FIN + FIN_SZ
MLIN_SZ = 64*128
WS_USED = MLIN + MLIN_SZ
STAMP = 4 << 20

L_XN = 0
L_QP = 5120
L_MLW = L_QP + 2048
L_FAC = L_MLW + 32
L_OP = L_FAC + 32
L_YP = L_OP + 2048
LDS_SZ = L_YP + 4*640*4

class G:
    def __init__(self):
        self.L = []
    def __call__(self, s):
        self.L.append('  ' + s)
    def label(self, s):
        self.L.append(s + ':')
    def c(self, s):
        self.L.append('  ; ' + s)

def vr(a, n=4):
    return f'v[{a}:{a+n-1}]'

def gen(NS=3, SCAP=8, VCAP=16, FCAP=2, QCAP=8, WCAP=8, rot=1, diag=False, wnt='', mimic=True, hfirst=True, kvmod=' nt', spin=1<<17, abl=''):
    R = NS * 16
    if 'p' in abl: spin = 0
    g = G()
    stamp_n = [0]
    def stamp(idx):
        if diag:
            g(f's_memrealtime s[76:77]')
            g('s_waitcnt lgkmcnt(0)')
            g(f's_mov_b32 s{80+idx}, s76')
    def stamp_flush():
        if diag:
            g('s_lshl_b32 s76, s2, 3')
            g('s_add_u32 s76, s76, s3')
            g('s_lshl_b32 s76, s76, 6')
            g(f's_add_u32 s76, s76, {STAMP}')
            g('s_mov_b64 exec, 1')
            for q in range(4):
                for r in range(4):
                    g(f'v_mov_b32 v{4+r}, s{80+4*q+r}')
                g('v_mov_b32 v8, 0')
                g(f'buffer_store_dwordx4 v[4:7], v8, s[72:75], s76 offen offset:{16*q}')
                g('s_nop 1')
            g('s_waitcnt vmcnt(0)')

    g('s_cmp_ge_u32 s2, 256')
    g('s_cbranch_scc1 L_exit')
    if diag:
        g('s_memrealtime s[78:79]')
    g('s_load_dwordx16 s[16:31], s[0:1], 0')
    g('s_load_dwordx8 s[32:39], s[0:1], 64')
    g('s_load_dwordx2 s[40:41], s[0:1], 96')
    g('v_lshrrev_b32 v1, 6, v0')
    g('v_and_b32 v0, 63, v0')
    g('v_readfirstlane_b32 s3, v1')
    g('s_and_b32 s4, s2, 7')
    g('s_lshr_b32 s5, s2, 3')
    g('s_lshr_b32 s6, s5, 3')
    g('s_lshl_b32 s7, s4, 2')
    g('s_add_u32 s6, s6, s7')
    g('s_bfe_u32 s7, s5, 0x10002')
    g('s_and_b32 s8, s5, 3')
    g('s_lshl_b32 s9, s7, 5')
    g('s_add_u32 s9, s9, s6')
    g('s_and_b32 s10, s3, 3')
    g('v_and_b32 v2, 1, v0')
    g('v_lshlrev_b32 v2, 4, v2')
    g('v_mov_b32 v3, 0xffff')
    g('v_lshlrev_b32 v3, v2, v3')
    g('v_bfe_u32 v2, v0, 1, 2')
    for t in range(4):
        g(f'v_cmp_eq_u32 vcc, {t}, v2')
        g('s_nop 1')
        g(f'v_cndmask_b32 v{6+t}, 0, v3, vcc')
    if diag:
        for i in range(16):
            g(f's_mov_b32 s{80+i}, 0')
    g('s_cmp_ge_u32 s3, 4')
    g('s_waitcnt lgkmcnt(0)')
    if diag:
        g('s_mov_b32 s72, s40')
        g('s_mov_b32 s73, s41')
        g(f's_mov_b32 s74, {STAMP + (1<<20)}')
        g('s_mov_b32 s75, 0x20000')
        g('s_mov_b32 s80, s78')
    g('s_cbranch_scc%d L_helper' % (0 if hfirst else 1))

    RB = 64
    def slot(k, s): return RB + 4*(16*k + s)
    g.c('stream wave: K/V region SRD s[44:47], V base s[48:49]')
    g('s_lshl_b32 s11, s9, 21')
    g('s_lshr_b32 s12, s9, 11')
    g('s_add_u32 s44, s18, s11')
    g('s_addc_u32 s45, s19, s12')
    g('s_mov_b32 s46, 0x200000')
    g('s_mov_b32 s47, 0x20000')
    g('s_add_u32 s48, s20, s11')
    g('s_addc_u32 s49, s21, s12')
    g('v_lshlrev_b32 v1, 4, v0')
    g('s_lshl_b32 s13, s8, 2')
    g('s_add_u32 s13, s13, s10')
    g('s_lshl_b32 s13, s13, 12')
    if rot:
        g(f's_mul_i32 s14, s9, {rot*65536}')
        g('s_add_u32 s13, s13, s14')
        g('s_and_b32 s13, s13, 0x1fffff')
    def issue_piece(k, pc):
        for i in range(4):
            r = slot(k, 4*pc+i)
            g(f'buffer_load_dwordx4 {vr(r)}, v1, s[44:47], s13 offen offset:{1024*i}{kvmod}')
        g('s_add_u32 s13, s13, 0x10000')
        g('s_and_b32 s13, s13, 0x1fffff')
    for k in range(NS):
        for pc in range(4):
            if 16*k + 4*pc >= SCAP:
                g(f's_waitcnt vmcnt({SCAP-4})')
            issue_piece(k, pc)
    g(f's_mov_b32 s14, {NS}')
    g('s_mov_b32 s50, 0xcccccccc')
    g('s_mov_b32 s51, 0xcccccccc')
    g('s_mov_b32 s52, 0xaaaaaaaa')
    g('s_mov_b32 s53, 0xaaaaaaaa')
    g('v_and_b32 v28, 15, v0')
    g('v_lshlrev_b32 v28, 5, v28')
    stamp(1)
    g('s_barrier')
    stamp(2)
    for u in range(4):
        g(f'ds_read_b128 {vr(32+8*u)}, v28 offset:{L_QP+512*u}')
        g(f'ds_read_b128 {vr(36+8*u)}, v28 offset:{L_QP+512*u+16}')
    g('s_waitcnt lgkmcnt(0)')
    for e in range(8):
        g(f'v_add_f32 v{32+e}, v{32+e}, v{40+e}')
        g(f'v_add_f32 v{48+e}, v{48+e}, v{56+e}')
    for e in range(8):
        g(f'v_add_f32 v{32+e}, v{32+e}, v{48+e}')
    for t in range(4):
        g(f'v_cvt_pk_bf16_f32 v{2+t}, v{32+2*t}, v{33+2*t}')

    def blk_stamp():
        if diag:
            g('s_memrealtime s[76:77]')
            g('s_mov_b32 m0, s14')
            g('s_waitcnt lgkmcnt(0)')
            g('v_writelane_b32 v63, s76, m0')
    def kblk_head():
        blk_stamp()
        g('s_cmp_eq_u32 s14, 8')
        g('s_cselect_b32 s44, s48, s44')
        g('s_cselect_b32 s45, s49, s45')
        g('s_cmp_le_u32 s14, 8')
        g('s_cselect_b64 vcc, -1, 0')
        g('s_add_u32 s14, s14, 1')
    def vblk_head():
        blk_stamp()
        g(f's_cmp_ge_u32 s14, {15+NS}')
        g('s_cselect_b32 s46, 0, s46')
        g('s_add_u32 s14, s14, 1')
    DM = 'row_mask:0xf'
    def kblock(k):
        kblk_head()
        for pc in range(4):
            for t in range(4):
                for i in range(4):
                    r = slot(k, 4*pc+i) + t
                    if t == 0:
                        g(f'v_dot2_f32_bf16 v{18+i}, v{r}, v2, 0')
                    else:
                        g(f'v_dot2c_f32_bf16 v{18+i}, v{r}, v{2+t}')
            g(f's_cbranch_vccz L_kni{k}_{pc}')
            g(f's_waitcnt vmcnt({SCAP-4})')
            issue_piece(k, pc)
            g.label(f'L_kni{k}_{pc}')
            g('s_nop 1')
            g(f'v_add_f32_dpp v22, v18, v18 row_ror:8 {DM} bank_mask:0x3')
            g(f'v_add_f32_dpp v23, v20, v20 row_ror:8 {DM} bank_mask:0x3')
            g(f'v_add_f32_dpp v22, v19, v19 row_ror:8 {DM} bank_mask:0xc')
            g(f'v_add_f32_dpp v23, v21, v21 row_ror:8 {DM} bank_mask:0xc')
            g('s_nop 0')
            g(f'v_add_f32_dpp v{24+pc}, v22, v22 row_shl:4 {DM} bank_mask:0x5')
            g(f'v_add_f32_dpp v{24+pc}, v23, v23 row_shr:4 {DM} bank_mask:0xa')
        for e in range(7):
            g(f'v_mov_b32 v{10+e}, v{11+e}')
        for pc in range(4):
            g(f'v_add_f32_dpp v{24+pc}, v{24+pc}, v{24+pc} quad_perm:[2,3,0,1] {DM} bank_mask:0xf')
        g('v_cndmask_b32 v24, v24, v25, s[50:51]')
        g('v_cndmask_b32 v26, v26, v27, s[50:51]')
        g('s_nop 0')
        g(f'v_add_f32_dpp v24, v24, v24 quad_perm:[1,0,3,2] {DM} bank_mask:0xf')
        g(f'v_add_f32_dpp v26, v26, v26 quad_perm:[1,0,3,2] {DM} bank_mask:0xf')
        g('v_cndmask_b32 v17, v24, v26, s[52:53]')
    def pi(pc, i): return 8*(i & 1) + 4*(i >> 1) + 2*(pc & 1) + (pc >> 1)
    def vblock(k):
        vblk_head()
        def build(a, pc, i):
            for t in range(4):
                g(f'v_and_b32_dpp v{a+t}, v10, v{6+t} row_newbcast:{pi(pc,i)} {DM} bank_mask:0xf')
        for pc in range(4):
            for i in range(4):
                build(36+4*i, pc, i)
            g(f's_waitcnt vmcnt(12)')
            g('s_nop 0')
            for i in range(4):
                r = slot(k, 4*pc+i)
                g(f'v_mfma_f32_16x16x32_bf16 v[32:35], {vr(36+4*i)}, {vr(r)}, v[32:35]')
            if VCAP < 16:
                g(f's_waitcnt vmcnt({VCAP-4})')
            issue_piece(k, pc)
        for e in range(7):
            g(f'v_mov_b32 v{10+e}, v{11+e}')

    g.label('L_kloop')
    for k in range(NS):
        kblock(k)
        if k == (7 % NS):
            g(f's_cmp_eq_u32 s14, {8+NS}')
            if k == NS-1:
                g('s_cbranch_scc0 L_kloop')
            else:
                g('s_cbranch_scc1 L_soft')
    if (7 % NS) != NS-1:
        g('s_branch L_kloop')
    g.label('L_soft')
    stamp(3)
    scale = 128 ** -0.5
    log2e = math.log2(math.e)
    if mimic:
        g(f's_mov_b32 s54, 0x{f2u(scale):08x}')
        g(f's_mov_b32 s55, 0x{f2u(log2e):08x}')
        for e in range(8):
            g(f'v_cvt_pk_bf16_f32 v{10+e}, 0, v{10+e}')
        for e in range(8):
            g(f'v_mul_f32 v{10+e}, s54, v{10+e}')
        for e in range(8):
            g(f'v_cvt_pk_bf16_f32 v{10+e}, 0, v{10+e}')
        for e in range(8):
            g(f'v_mul_f32 v{10+e}, s55, v{10+e}')
    else:
        g(f's_mov_b32 s55, 0x{f2u(scale*log2e):08x}')
        for e in range(8):
            g(f'v_mul_f32 v{10+e}, s55, v{10+e}')
    def allreduce(op, r, t):
        g('s_nop 1')
        for m in ('row_ror:8', 'row_ror:4', 'row_ror:2', 'row_ror:1'):
            g(f'{op}_dpp v{r}, v{r}, v{r} {m} {DM} bank_mask:0xf')
            g('s_nop 1')
        for sw in ('v_permlane16_swap_b32', 'v_permlane32_swap_b32'):
            g(f'v_mov_b32 v{t}, v{r}')
            g('s_nop 1')
            g(f'{sw} v{r}, v{t}')
            g('s_nop 1')
            g(f'{op} v{r}, v{r}, v{t}')
    g('v_max3_f32 v18, v10, v11, v12')
    g('v_max3_f32 v19, v13, v14, v15')
    g('v_max3_f32 v18, v18, v16, v17')
    g('v_max_f32 v18, v18, v19')
    allreduce('v_max_f32', 18, 20)
    for e in range(8):
        g(f'v_sub_f32 v{10+e}, v{10+e}, v18')
    for e in range(8):
        g(f'v_exp_f32 v{10+e}, v{10+e}')
    g('s_nop 0')
    g('v_add_f32 v19, v10, v11')
    g('v_add_f32 v20, v12, v13')
    g('v_add_f32 v21, v14, v15')
    g('v_add_f32 v22, v16, v17')
    g('v_add_f32 v19, v19, v20')
    g('v_add_f32 v21, v21, v22')
    g('v_add_f32 v19, v19, v21')
    allreduce('v_add_f32', 19, 20)
    for e in range(8):
        g(f'v_cvt_pk_bf16_f32 v{10+e}, v{10+e}, v{10+e}')
    g('v_min_u32 v18, -2, v18')
    g('v_min_u32 v19, -2, v19')
    g('s_lshl_b32 s15, s10, 3')
    g('v_mov_b32 v20, s15')
    g(f'ds_write_b64 v20, v[18:19] offset:{L_MLW}')
    for r in range(4):
        g(f'v_mov_b32 v{32+r}, 0')
    g('v_and_b32 v28, 15, v0')
    g('v_lshlrev_b32 v28, 5, v28')
    g('v_and_b32 v29, 16, v0')
    g('v_add_u32 v28, v28, v29')
    g('s_lshl_b32 s15, s10, 9')
    g('v_add_u32 v28, s15, v28')
    g.label('L_vloop')
    vblock(8 % NS)
    g(f's_cmp_eq_u32 s14, {16+NS}')
    g('s_cbranch_scc0 L_vloop')
    g.label('L_vdone')
    g('s_nop 1')
    g(f'ds_write_b128 v28, v[32:35] offset:{L_OP}')
    g('s_waitcnt lgkmcnt(0)')
    stamp(4)
    g('s_barrier')
    if diag:
        g('s_lshl_b32 s76, s2, 3')
        g('s_add_u32 s76, s76, s3')
        g('s_lshl_b32 s76, s76, 8')
        g(f's_add_u32 s76, s76, {STAMP + (1<<18)}')
        g('v_lshlrev_b32 v8, 2, v0')
        g('buffer_store_dword v63, v8, s[72:75], s76 offen')
    stamp_flush()
    g('s_endpgm')

    g.label('L_helper')
    if 'h' in abl:
        stamp_flush()
        g('s_endpgm')
    g.c('SRDs: x s[44:47], wq s[48:51], ws s[52:55], wo s[56:59], dbg s[60:63]')
    g('s_mov_b32 s44, s16'); g('s_mov_b32 s45, s17'); g('s_movk_i32 s46, 2560'); g('s_mov_b32 s47, 0x20000')
    g('s_lshl_b32 s11, s6, 8')
    g('s_add_u32 s48, s22, s11'); g('s_addc_u32 s49, s23, 0')
    g(f's_sub_u32 s50, {640*8192}, s11'); g('s_mov_b32 s51, 0x20000')
    g('s_mov_b32 s52, s40'); g('s_mov_b32 s53, s41'); g(f's_mov_b32 s54, {WS_USED}'); g('s_mov_b32 s55, 0x20000')
    g(f's_mul_i32 s11, s6, {128*1280}')
    g('s_add_u32 s56, s24, s11'); g('s_addc_u32 s57, s25, 0')
    g(f's_mov_b32 s58, {128*1280}'); g('s_mov_b32 s59, 0x20000')
    g('s_mov_b32 s60, s38'); g('s_mov_b32 s61, s39'); g('s_movk_i32 s62, 256'); g('s_mov_b32 s63, 0x20000')
    if 'q' in abl: g('s_mov_b32 s50, 0')
    if 'o' in abl: g('s_mov_b32 s58, 0')
    g('v_lshlrev_b32 v1, 2, v0')
    for b in range(2):
        for k in range(5):
            g(f'buffer_load_dword v{10+5*b+k}, v1, s[44:47], 0 offen offset:{1280*b+256*k}')
    g('v_lshrrev_b32 v3, 4, v0')
    g('v_and_b32 v4, 15, v0')
    g('v_mul_u32_u24 v2, 40, v3')
    g('s_mul_i32 s11, s10, 160')
    g('v_add_u32 v2, s11, v2')
    g('v_lshlrev_b32 v5, 2, v2')
    g('v_lshlrev_b32 v2, 13, v2')
    g('v_lshl_add_u32 v2, v4, 4, v2')
    QB = 96
    g('s_mov_b32 s12, 0')
    for i in range(QCAP):
        g(f'buffer_load_dwordx4 {vr(QB+4*i)}, v2, s[48:51], s12 offen{wnt}')
        g('s_add_u32 s12, s12, 0x2000')
    g('s_mul_i32 s14, s4, 27')
    g('s_add_u32 s14, s14, s5')
    g('s_mul_i32 s15, s4, 5')
    g('s_add_u32 s15, s15, s5')
    g('s_sub_u32 s15, s15, 27')
    for r in range(4):
        g(f'v_mov_b32 v{20+r}, -1')
    g('s_lshl_b32 s11, s10, 6')
    g('v_add_u32 v25, s11, v0')
    g('v_lshrrev_b32 v24, 3, v25')
    g('s_mul_i32 s11, s7, 20')
    g('v_add_u32 v24, s11, v24')
    g('v_lshlrev_b32 v24, 14, v24')
    g('v_and_b32 v26, 7, v25')
    g('v_lshl_add_u32 v24, v26, 4, v24')
    g('s_lshl_b32 s11, s6, 2')
    g('s_add_u32 s11, s11, s8')
    g('s_lshl_b32 s11, s11, 7')
    g('v_add_u32 v24, s11, v24')
    g('v_cmp_gt_u32 vcc, 160, v25')
    g('v_mov_b32 v26, 0x7ffffff0')
    g('s_nop 0')
    g('v_cndmask_b32 v24, v26, v24, vcc')
    if 'c' in abl: g('v_mov_b32 v24, v26')
    g('buffer_store_dwordx4 v[20:23], v24, s[52:55], 0 offen sc1')
    g('v_lshrrev_b32 v26, 1, v3')
    g('v_mul_u32_u24 v26, 20, v26')
    g('v_lshrrev_b32 v27, 2, v4')
    g('v_add_u32 v26, v26, v27')
    g(f'v_mul_u32_u24 v26, {216*128}, v26')
    g('v_and_b32 v27, 3, v4')
    g('v_lshlrev_b32 v27, 5, v27')
    g('v_add_u32 v26, v26, v27')
    g('v_and_b32 v27, 16, v0')
    g('v_add_u32 v27, v26, v27')
    g('s_lshl_b32 s11, s14, 7')
    g(f's_add_u32 s11, s11, {FIN}')
    g('v_add_u32 v27, s11, v27')
    if 'c' in abl: g('v_mov_b32 v27, 0x7ff00000')
    g('s_cmp_lt_u32 s5, 27')
    g('s_cselect_b32 s64, 1, 0')
    g('s_cmp_eq_u32 s10, 3')
    g('s_cselect_b32 s64, s64, 0')
    g('s_cmp_ge_u32 s5, 27')
    g('s_cselect_b32 s65, 1, 0')
    g('s_cmp_eq_u32 s10, 1')
    g('s_cselect_b32 s65, s65, 0')
    g('s_lshl_b32 s66, s9, 7')
    g(f's_add_u32 s66, s66, {MLIN}')
    g(f's_waitcnt vmcnt({QCAP+1})')
    g('s_cmp_eq_u32 s64, 0')
    g('s_cbranch_scc1 L_noclrf')
    g('s_mov_b32 s11, 0')
    for blk in range(5):
        g(f'buffer_store_dwordx4 v[20:23], v27, s[52:55], s11 offen sc1')
        if blk < 4: g(f's_add_u32 s11, s11, {4*216*128}')
    g.label('L_noclrf')
    g('s_cmp_lg_u32 s10, 0')
    g('s_cbranch_scc1 L_noclrm')
    g('s_lshl_b32 s11, s8, 3')
    g('v_mov_b32 v26, s11')
    g('s_mov_b64 exec, 1')
    g('buffer_store_dwordx2 v[20:21], v26, s[52:55], s66 offen sc1')
    g('s_mov_b64 exec, -1')
    g('v_lshlrev_b32 v26, 2, v0')
    g('v_and_b32 v26, 31, v26')
    g(f'ds_write_b32 v26, v20 offset:{L_MLW}')
    g.label('L_noclrm')
    stamp(1)
    for b in range(2):
        for k in range(5):
            s = 10+5*b+k; d = 30+10*b+2*k
            g(f'v_lshlrev_b32 v{d}, 16, v{s}')
            g(f'v_and_b32 v{d+1}, 0xffff0000, v{s}')
    def allreduce2(op, ra, rb, ta, tb):
        g('s_nop 0')
        for m in ('row_ror:8', 'row_ror:4', 'row_ror:2', 'row_ror:1'):
            g(f'{op}_dpp v{ra}, v{ra}, v{ra} {m} {DM} bank_mask:0xf')
            g(f'{op}_dpp v{rb}, v{rb}, v{rb} {m} {DM} bank_mask:0xf')
            g('s_nop 0')
        for sw in ('v_permlane16_swap_b32', 'v_permlane32_swap_b32'):
            g(f'v_mov_b32 v{ta}, v{ra}')
            g(f'v_mov_b32 v{tb}, v{rb}')
            g('s_nop 0')
            g(f'{sw} v{ra}, v{ta}')
            g(f'{sw} v{rb}, v{tb}')
            g('s_nop 0')
            g(f'{op} v{ra}, v{ra}, v{ta}')
            g(f'{op} v{rb}, v{rb}, v{tb}')
    for b in range(2):
        d = 30+10*b
        g(f'v_add_f32 v{50+b}, v{d}, v{d+1}')
        for e in range(2, 10):
            g(f'v_add_f32 v{50+b}, v{50+b}, v{d+e}')
    allreduce2('v_add_f32', 50, 51, 52, 53)
    g(f's_mov_b32 s11, 0x{f2u(1.0/640):08x}')
    g('v_mul_f32 v50, s11, v50')
    g('v_mul_f32 v51, s11, v51')
    for b in range(2):
        d = 30+10*b
        for e in range(10):
            g(f'v_sub_f32 v54, v{d+e}, v{50+b}')
            if e == 0: g(f'v_mul_f32 v{56+b}, v54, v54')
            else: g(f'v_fmac_f32 v{56+b}, v54, v54')
    allreduce2('v_add_f32', 56, 57, 52, 53)
    g(f's_mov_b32 s13, 0x{f2u(1e-5):08x}')
    for b in range(2):
        g(f'v_mul_f32 v{56+b}, s11, v{56+b}')
        g(f'v_cvt_pk_bf16_f32 v{56+b}, 0, v{56+b}')
        g(f'v_add_f32 v{56+b}, s13, v{56+b}')
        g(f'v_cvt_pk_bf16_f32 v{56+b}, 0, v{56+b}')
        g(f'v_sqrt_f32 v{56+b}, v{56+b}')
        g(f'v_cvt_pk_bf16_f32 v{50+b}, 0, v{50+b}')
        g(f'v_cvt_pk_bf16_f32 v{56+b}, 0, v{56+b}')
        g(f'v_rcp_f32 v{58+b}, v{56+b}')
    for b in range(2):
        d = 30+10*b
        for e in range(10):
            g(f'v_sub_f32 v{d+e}, v{d+e}, v{50+b}')
        for e in range(10):
            g(f'v_cvt_pk_bf16_f32 v{d+e}, 0, v{d+e}')
        for e in range(10):
            g(f'v_mul_f32 v54, v{d+e}, v{58+b}')
            g(f'v_fma_f32 v55, -v54, v{56+b}, v{d+e}')
            g(f'v_fma_f32 v{d+e}, v55, v{58+b}, v54')
    g('v_lshlrev_b32 v26, 3, v0')
    for b in range(2):
        for k in range(5):
            d = 30+10*b+2*k
            g(f'v_cvt_pk_bf16_f32 v{10+5*b+k}, v{d}, v{d+1}')
            g(f'v_cvt_pk_bf16_f32 v{d}, v{d}, v{d}')
            g(f'v_cvt_pk_bf16_f32 v{d+1}, v{d+1}, v{d+1}')
            g(f'ds_write_b64 v26, v[{d}:{d+1}] offset:{L_XN+2560*b+512*k}')
    g('s_mul_i32 s11, s7, 2560')
    g('v_add_u32 v5, s11, v5')
    for r in range(4):
        g(f'v_mov_b32 v{32+r}, 0')
    g('s_waitcnt lgkmcnt(0)')
    stamp(2)
    nit = 40 // QCAP
    assert QCAP % 4 == 0 and 40 % QCAP == 0
    g('s_waitcnt vmcnt(0)')
    g(f's_mov_b32 s13, {nit}')
    g.label('L_qloop')
    XB = 44
    for i in range(QCAP//4):
        g(f'ds_read_b128 {vr(XB+4*i)}, v5 offset:{L_XN+16*i}')
    g(f'v_add_u32 v5, {4*QCAP}, v5')
    g('s_sub_u32 s13, s13, 1')
    g('s_cmp_eq_u32 s13, 0')
    g('s_cselect_b32 s50, 0, s50')
    g('s_waitcnt lgkmcnt(0)')
    for i in range(QCAP):
        a = 36 + 4*(i & 1)
        for t in range(4):
            g(f'v_and_b32 v{a+t}, v{XB+i}, v{6+t}')
        g(f's_waitcnt vmcnt({QCAP-1})')
        g('s_nop 0')
        g(f'v_mfma_f32_16x16x32_bf16 v[32:35], {vr(a)}, {vr(QB+4*i)}, v[32:35]')
        g(f'buffer_load_dwordx4 {vr(QB+4*i)}, v2, s[48:51], s12 offen{wnt}')
        g('s_add_u32 s12, s12, 0x2000')
    g('s_cmp_lg_u32 s13, 0')
    g('s_cbranch_scc1 L_qloop')
    g('v_lshlrev_b32 v28, 5, v4')
    g('v_and_b32 v29, 16, v0')
    g('v_add_u32 v28, v28, v29')
    g('s_lshl_b32 s11, s10, 9')
    g('v_add_u32 v29, s11, v28')
    g('s_nop 3')
    g(f'ds_write_b128 v29, v[32:35] offset:{L_QP}')
    g('s_waitcnt vmcnt(0) lgkmcnt(0)')
    stamp(3)
    g('s_barrier')
    stamp(4)
    g('s_cmp_lg_u32 s10, 0')
    g('s_cbranch_scc1 L_noclr')
    g('v_mov_b32 v20, 1')
    g('v_mov_b32 v21, 0')
    g('s_mov_b64 exec, 1')
    g('buffer_atomic_add v20, v21, s[60:63], 0 offen')
    g('s_mov_b64 exec, -1')
    g.label('L_noclr')
    g('s_cmp_eq_u32 s64, 0')
    g('s_cbranch_scc1 L_noffn')
    g.c('SRDs: w1 s[68:71], w2 s[44:47], b1 s[48:51]')
    g('s_mov_b32 s68, s28'); g('s_mov_b32 s69, s29'); g(f's_mov_b32 s70, {640*3456}'); g('s_mov_b32 s71, 0x20000')
    g('s_mov_b32 s44, s32'); g('s_mov_b32 s45, s33'); g(f's_mov_b32 s46, {1728*1280}'); g('s_mov_b32 s47, 0x20000')
    g('s_mov_b32 s48, s30'); g('s_mov_b32 s49, s31'); g('s_movk_i32 s50, 3456'); g('s_mov_b32 s51, 0x20000')
    if 'f' in abl:
        g('s_mov_b32 s70, 0'); g('s_mov_b32 s46, 0')
    g(f'v_mul_u32_u24 v20, {2*3456}, v0')
    g('s_lshl_b32 s11, s14, 4')
    W1B = 96
    for k in range(5):
        if 2*k >= FCAP: g(f's_waitcnt vmcnt({FCAP-1})')
        g(f'buffer_load_dwordx4 {vr(W1B+8*k)}, v20, s[68:71], s11 offen{wnt}')
        if 2*k+1 >= FCAP: g(f's_waitcnt vmcnt({FCAP-1})')
        g(f'buffer_load_dwordx4 {vr(W1B+8*k+4)}, v20, s[68:71], s11 offen offset:3456{wnt}')
        if k < 4: g(f's_add_u32 s11, s11, {128*3456}')
    g('v_lshlrev_b32 v21, 1, v3')
    g('s_lshl_b32 s11, s14, 4')
    g('buffer_load_ushort v30, v21, s[48:51], s11 offen')
    g('buffer_load_ushort v31, v21, s[48:51], s11 offen offset:8')
    W2B = 136
    g('v_mul_u32_u24 v21, 1280, v3')
    g('v_lshl_add_u32 v21, v4, 4, v21')
    g(f's_mul_i32 s11, s14, {8*1280}')
    for rg in range(2):
        for blk in range(5):
            g(f'buffer_load_dwordx4 {vr(W2B+4*(5*rg+blk))}, v21, s[44:47], s11 offen offset:{256*blk} nt')
        if rg == 0: g(f's_add_u32 s11, s11, {4*1280}')
    g('s_mov_b32 s12, 0x05040100')
    g('s_mov_b32 s13, 0x07060302')
    AC = 44
    for e in range(16):
        g(f'v_mov_b32 v{AC+e}, 0')
    for k in range(5):
        g(f's_waitcnt vmcnt({12 + 2*(4-k)})')
        A_, B_ = W1B+8*k, W1B+8*k+4
        for t in range(4):
            g(f'v_perm_b32 v{60+2*t}, v{B_+t}, v{A_+t}, s12')
            g(f'v_perm_b32 v{61+2*t}, v{B_+t}, v{A_+t}, s13')
        for b in range(2):
            for f in range(8):
                g(f'v_dot2c_f32_bf16 v{AC+8*b+f}, v{60+f}, v{10+5*b+k}')
    g('s_nop 2')
    for b in range(2):
        for rg in range(2):
            for g0 in range(2):
                g(f'v_permlane32_swap_b32 v{AC+8*b+4*rg+g0}, v{AC+8*b+4*rg+2+g0}')
    g('s_nop 1')
    for b in range(2):
        for rg in range(2):
            for g0 in range(2):
                a = AC+8*b+4*rg+g0
                g(f'v_add_f32 v{a}, v{a}, v{a+2}')
    g('s_nop 1')
    for b in range(2):
        for rg in range(2):
            a = AC+8*b+4*rg
            g(f'v_permlane16_swap_b32 v{a}, v{a+1}')
    g('s_nop 1')
    for b in range(2):
        for rg in range(2):
            a = AC+8*b+4*rg
            g(f'v_add_f32 v{a}, v{a}, v{a+1}')
    g('s_nop 1')
    for rg in range(2):
        g(f'v_add_f32_dpp v{60+rg}, v{AC+4*rg}, v{AC+4*rg} row_ror:8 {DM} bank_mask:0x3')
        g(f'v_add_f32_dpp v{60+rg}, v{AC+8+4*rg}, v{AC+8+4*rg} row_ror:8 {DM} bank_mask:0xc')
    for m in ('row_half_mirror', 'quad_perm:[2,3,0,1]', 'quad_perm:[1,0,3,2]'):
        g('s_nop 1')
        for rg in range(2):
            g(f'v_add_f32_dpp v{60+rg}, v{60+rg}, v{60+rg} {m} {DM} bank_mask:0xf')
    g('s_waitcnt vmcnt(10)')
    for rg in range(2):
        g(f'v_cvt_pk_bf16_f32 v{60+rg}, 0, v{60+rg}')
        g(f'v_lshlrev_b32 v{30+rg}, 16, v{30+rg}')
        g(f'v_add_f32 v{60+rg}, v{60+rg}, v{30+rg}')
        g(f'v_cvt_pk_bf16_f32 v{60+rg}, 0, v{60+rg}')
        g(f'v_cmp_lt_f32 vcc, 0, v{60+rg}')
        g('s_nop 1')
        g(f'v_cndmask_b32 v{60+rg}, 0, v{60+rg}, vcc')
        g(f'v_mul_f32 v{60+rg}, v{60+rg}, v{60+rg}')
        g(f'v_cvt_pk_bf16_f32 v{60+rg}, v{60+rg}, v{60+rg}')
        for t in range(4):
            g(f'v_and_b32 v{36+4*rg+t}, v{60+rg}, v{6+t}')
    g('s_waitcnt vmcnt(0)')
    g('s_nop 0')
    FD = 64
    for blk in range(5):
        g(f'v_mfma_f32_16x16x32_bf16 {vr(FD+4*blk)}, v[36:39], {vr(W2B+4*blk)}, 0')
    for blk in range(5):
        g(f'v_mfma_f32_16x16x32_bf16 {vr(FD+4*blk)}, v[40:43], {vr(W2B+4*(5+blk))}, {vr(FD+4*blk)}')
    g('s_nop 7')
    g('s_mov_b32 s11, 0')
    for blk in range(5):
        for r in range(4):
            g(f'v_min_u32 v{FD+4*blk+r}, -2, v{FD+4*blk+r}')
        g(f'buffer_store_dwordx4 {vr(FD+4*blk)}, v27, s[52:55], s11 offen sc1')
        if blk < 4: g(f's_add_u32 s11, s11, {4*216*128}')
    g.label('L_noffn')
    stamp(5)
    WOB = 96
    g('v_mul_u32_u24 v20, %d, v3' % (8*1280))
    g('v_lshl_add_u32 v20, v4, 4, v20')
    g(f's_mul_i32 s11, s10, {32*1280}')
    n = 0
    for rg in range(8):
        for blk in range(5):
            if n >= WCAP:
                g(f's_waitcnt vmcnt({WCAP-1})')
            g(f'buffer_load_dwordx4 {vr(WOB+4*(5*rg+blk))}, v20, s[56:59], s11 offen offset:{256*blk}{wnt}')
            n += 1
        if rg < 7: g('s_add_u32 s11, s11, 1280')
    g('s_waitcnt vmcnt(0)')
    stamp(6)
    g('s_cmp_eq_u32 s10, 0')
    g('s_cselect_b32 s11, 1, s65')
    g('s_cmp_eq_u32 s11, 0')
    g('s_cbranch_scc1 L_bar2')
    g('v_mov_b32 v21, 0')
    g(f's_mov_b32 s12, {spin}')
    g.label('L_clrpoll')
    g('buffer_load_dword v20, v21, s[60:63], 0 offen sc1')
    g('s_waitcnt vmcnt(0)')
    g('v_readfirstlane_b32 s11, v20')
    g('s_sub_u32 s12, s12, 1')
    g('s_cbranch_scc1 L_clrok')
    g('s_cmp_ge_u32 s11, 256')
    g('s_cbranch_scc1 L_clrok')
    g('s_sleep 16')
    g('s_branch L_clrpoll')
    g.label('L_clrok')
    g('s_cmp_lg_u32 s10, 0')
    g('s_cbranch_scc1 L_cons_g')
    g('v_and_b32 v21, 3, v0')
    g('v_lshlrev_b32 v21, 3, v21')
    g(f's_mov_b32 s12, {spin}')
    g.label('L_mlw')
    g(f'ds_read_b64 v[30:31], v21 offset:{L_MLW}')
    g('s_waitcnt lgkmcnt(0)')
    g('v_max_u32 v22, v30, v31')
    g('v_cmp_eq_u32 vcc, -1, v22')
    g('s_sub_u32 s12, s12, 1')
    g('s_cbranch_scc1 L_mlwok')
    g('s_cbranch_vccz L_mlwok')
    g('s_sleep 8')
    g('s_branch L_mlw')
    g.label('L_mlwok')
    def quadred(op, r):
        g('s_nop 1')
        g(f'{op}_dpp v{r}, v{r}, v{r} quad_perm:[2,3,0,1] {DM} bank_mask:0xf')
        g('s_nop 1')
        g(f'{op}_dpp v{r}, v{r}, v{r} quad_perm:[1,0,3,2] {DM} bank_mask:0xf')
    g('v_mov_b32 v32, v30')
    quadred('v_max_f32', 32)
    g('v_sub_f32 v33, v30, v32')
    g('v_exp_f32 v33, v33')
    g('s_nop 0')
    g('v_mul_f32 v33, v33, v31')
    quadred('v_add_f32', 33)
    g('v_min_u32 v32, -2, v32')
    g('v_min_u32 v33, -2, v33')
    g('s_lshl_b32 s11, s8, 3')
    g('v_mov_b32 v22, s11')
    g('s_mov_b64 exec, 1')
    g('buffer_store_dwordx2 v[32:33], v22, s[52:55], s66 offen sc1')
    g('s_mov_b64 exec, -1')
    g(f's_mov_b32 s12, {spin}')
    g.label('L_mlg')
    g('buffer_load_dwordx2 v[34:35], v21, s[52:55], s66 offen sc1')
    g('s_waitcnt vmcnt(0)')
    g('v_max_u32 v22, v34, v35')
    g('v_cmp_eq_u32 vcc, -1, v22')
    g('s_sub_u32 s12, s12, 1')
    g('s_cbranch_scc1 L_mlgok')
    g('s_cbranch_vccz L_mlgok')
    g('s_sleep 16')
    g('s_branch L_mlg')
    g.label('L_mlgok')
    g('v_mov_b32 v32, v34')
    quadred('v_max_f32', 32)
    g('v_sub_f32 v33, v34, v32')
    g('v_exp_f32 v33, v33')
    g('s_nop 0')
    g('v_mul_f32 v33, v33, v35')
    quadred('v_add_f32', 33)
    g('v_sub_f32 v30, v30, v32')
    g('v_exp_f32 v30, v30')
    g('v_rcp_f32 v33, v33')
    g('s_nop 0')
    g('v_mul_f32 v30, v30, v33')
    g('v_lshrrev_b32 v21, 1, v21')
    g(f'ds_write_b32 v21, v30 offset:{L_FAC}')
    g('s_waitcnt lgkmcnt(0)')
    g('s_branch L_bar2')
    g.label('L_cons_g')
    g.c('SRDs: x s[44:47] (still), b2 s[48:51], out s[68:71]')
    g('s_mov_b32 s48, s34'); g('s_mov_b32 s49, s35'); g('s_movk_i32 s50, 1280'); g('s_mov_b32 s51, 0x20000')
    g('v_and_b32 v23, 7, v0')
    g('v_lshl_add_u32 v23, v23, 2, v3')
    g('s_lshl_b32 s11, s15, 5')
    g('v_add_u32 v23, s11, v23')
    g('v_lshlrev_b32 v23, 1, v23')
    g('buffer_load_ushort v90, v23, s[44:47], 0 offen')
    g('s_cmp_ge_u32 s15, 20')
    g('s_cselect_b32 s11, 1280, 0')
    g('v_subrev_u32 v22, s11, v23')
    g('buffer_load_ushort v91, v22, s[48:51], 0 offen')
    g('v_lshlrev_b32 v22, 4, v0')
    g(f's_mul_i32 s13, s15, {216*128}')
    g(f's_add_u32 s13, s13, {FIN}')
    for r in range(4):
        g(f'v_mov_b32 v{32+r}, 0')
    g('s_mov_b32 s67, 3')
    g.label('L_fnext')
    g(f's_mov_b32 s12, {spin}')
    g.label('L_fpoll')
    FB = 44
    for i in range(9):
        if i in (4, 8):
            g(f's_add_u32 s11, s13, {1024*i}')
        so = 's13' if i < 4 else 's11'
        g(f'buffer_load_dwordx4 {vr(FB+4*i)}, v22, s[52:55], {so} offen offset:{1024*(i%4)} sc1')
    g('s_waitcnt vmcnt(0)')
    g(f'v_max3_u32 v20, v{FB}, v{FB+1}, v{FB+2}')
    for e in range(3, 35, 2):
        g(f'v_max3_u32 v20, v20, v{FB+e}, v{FB+e+1}')
    g(f'v_max_u32 v20, v20, v{FB+35}')
    g('v_cmp_eq_u32 vcc, -1, v20')
    g('s_sub_u32 s12, s12, 1')
    g('s_cbranch_scc1 L_fok')
    g('s_cbranch_vccz L_fok')
    g('s_sleep 32')
    g('s_branch L_fpoll')
    g.label('L_fok')
    for i in range(9):
        for r in range(4):
            g(f'v_add_f32 v{32+r}, v{32+r}, v{FB+4*i+r}')
    g(f's_add_u32 s13, s13, {9*1024}')
    g('s_sub_u32 s67, s67, 1')
    g('s_cmp_lg_u32 s67, 0')
    g('s_cbranch_scc1 L_fnext')
    def red8(a):
        g('s_nop 1')
        for r in range(4):
            g(f'v_add_f32_dpp v{a+r}, v{a+r}, v{a+r} row_ror:8 {DM} bank_mask:0xf')
        g('s_nop 0')
        g(f'v_permlane16_swap_b32 v{a}, v{a+1}')
        g(f'v_permlane16_swap_b32 v{a+2}, v{a+3}')
        g('s_nop 0')
        g(f'v_add_f32 v{a}, v{a}, v{a+1}')
        g(f'v_add_f32 v{a+2}, v{a+2}, v{a+3}')
        g('s_nop 1')
        g(f'v_permlane32_swap_b32 v{a}, v{a+2}')
        g('s_nop 1')
        g(f'v_add_f32 v{a}, v{a}, v{a+2}')
    red8(32)
    g('v_cvt_pk_bf16_f32 v32, 0, v32')
    g('v_lshlrev_b32 v91, 16, v91')
    g('v_lshlrev_b32 v90, 16, v90')
    g('v_add_f32 v32, v32, v91')
    g('v_cvt_pk_bf16_f32 v32, 0, v32')
    g(f'v_mul_f32 v33, 0x{f2u(-log2e):08x}, v32')
    g('v_exp_f32 v33, v33')
    g('s_nop 0')
    g('v_add_f32 v33, 1.0, v33')
    g('v_rcp_f32 v33, v33')
    g('s_nop 0')
    g('v_mul_f32 v32, v32, v33')
    g('v_cvt_pk_bf16_f32 v91, 0, v32')
    g.label('L_bar2')
    g('s_mov_b32 s68, s36'); g('s_mov_b32 s69, s37'); g('s_movk_i32 s70, 2560'); g('s_mov_b32 s71, 0x20000')
    g('s_lshl_b32 s11, s10, 7')
    g('v_lshl_add_u32 v21, v3, 5, s11')
    g('v_mov_b32 v20, 0')
    g(f's_mul_i32 s11, s10, {640*4}')
    g('v_add_u32 v29, s11, v28')
    g('v_lshlrev_b32 v26, 4, v25')
    stamp(7)
    g('s_barrier')
    stamp(8)
    g(f'ds_read_b128 v[84:87], v20 offset:{L_FAC}')
    for u in range(4):
        g(f'ds_read_b128 {vr(44+8*u)}, v21 offset:{L_OP+512*u}')
        g(f'ds_read_b128 {vr(48+8*u)}, v21 offset:{L_OP+512*u+16}')
    g('s_waitcnt lgkmcnt(6)')
    for e in range(8):
        g(f'v_mul_f32 v{44+e}, v84, v{44+e}')
    for u in range(1, 4):
        g(f's_waitcnt lgkmcnt({6-2*u})')
        for e in range(8):
            g(f'v_fmac_f32 v{44+e}, v{84+u}, v{44+8*u+e}')
    for e in range(8):
        g(f'v_cvt_pk_bf16_f32 v{44+e}, v{44+e}, v{44+e}')
    YD = 64
    def buildA(a, rg):
        for t in range(4):
            g(f'v_and_b32 v{a+t}, v{44+rg}, v{6+t}')
    buildA(36, 0)
    for rg in range(8):
        a = 36 + 4*(rg & 1)
        if rg < 7:
            buildA(36 + 4*((rg+1) & 1), rg+1)
        for blk in range(5):
            c_ = '0' if rg == 0 else vr(YD+4*blk)
            g(f'v_mfma_f32_16x16x32_bf16 {vr(YD+4*blk)}, {vr(a)}, {vr(WOB+4*(5*rg+blk))}, {c_}')
    g('s_nop 3')
    for blk in range(5):
        g(f'ds_write_b128 v29, {vr(YD+4*blk)} offset:{L_YP+512*blk}')
        if blk == 0: g('s_nop 0')
    g('s_waitcnt lgkmcnt(0)')
    g('s_barrier')
    for u in range(4):
        g(f'ds_read_b128 {vr(44+4*u)}, v26 offset:{L_YP+2560*u}')
    g('s_waitcnt lgkmcnt(2)')
    for r in range(4):
        g(f'v_add_f32 v{44+r}, v{44+r}, v{48+r}')
    g('s_waitcnt lgkmcnt(0)')
    for r in range(4):
        g(f'v_add_f32 v{52+r}, v{52+r}, v{56+r}')
    for r in range(4):
        g(f'v_add_f32 v{44+r}, v{44+r}, v{52+r}')
    for r in range(4):
        g(f'v_min_u32 v{44+r}, -2, v{44+r}')
    g('buffer_store_dwordx4 v[44:47], v24, s[52:55], 0 offen sc1')
    stamp(9)
    g('s_cmp_eq_u32 s65, 0')
    g('s_cbranch_scc1 L_hend')
    g('s_lshl_b32 s13, s15, 14')
    g(f's_mov_b32 s12, {spin}')
    g.label('L_ypoll')
    YB = 96
    for i in range(16):
        if i and i % 4 == 0:
            g(f's_add_u32 s11, s13, {1024*i}')
        so = 's13' if i < 4 else 's11'
        g(f'buffer_load_dwordx4 {vr(YB+4*i)}, v22, s[52:55], {so} offen offset:{1024*(i%4)} sc1')
    for i in range(16):
        g(f's_waitcnt vmcnt({15-i})')
        r = YB+4*i
        if i == 0:
            g(f'v_max3_u32 v20, v{r}, v{r+1}, v{r+2}')
            g(f'v_max_u32 v20, v20, v{r+3}')
        else:
            g(f'v_max3_u32 v20, v20, v{r}, v{r+1}')
            g(f'v_max3_u32 v20, v20, v{r+2}, v{r+3}')
            for e in range(4):
                g(f'v_add_f32 v{YB+e}, v{YB+e}, v{r+e}')
    g('v_cmp_eq_u32 vcc, -1, v20')
    g('s_sub_u32 s12, s12, 1')
    g('s_cbranch_scc1 L_yok')
    g('s_cbranch_vccnz L_ypoll')
    g.label('L_yok')
    red8(YB)
    g(f'v_cvt_pk_bf16_f32 v32, 0, v{YB}')
    g('v_mul_f32 v32, v32, v91')
    g('v_cvt_pk_bf16_f32 v32, 0, v32')
    g('v_add_f32 v32, v32, v90')
    g('v_cvt_pk_bf16_f32 v32, v32, v32')
    g('buffer_store_short v32, v23, s[68:71], 0 offen')
    stamp(10)
    g.label('L_hend')
    stamp_flush()
    g.label('L_exit')
    g('s_endpgm')

    out = HEADER
    out += f"; @launch grid=(256,1,1) block=(512,1,1) lds={LDS_SZ}\n"
    out += '.amdgcn_target "amdgcn-amd-amdhsa--gfx950"\n.text\n'
    out += f'.globl {NAME}_kernel\n.p2align 8\n.type {NAME}_kernel,@function\n{NAME}_kernel:\n'
    out += '\n'.join(g.L) + '\n'
    out += f""".section .rodata,"a"
.p2align 6
.amdhsa_kernel {NAME}_kernel
  .amdhsa_next_free_vgpr 256
  .amdhsa_next_free_sgpr 96
  .amdhsa_accum_offset 256
  .amdhsa_group_segment_fixed_size 0
  .amdhsa_kernarg_size 104
  .amdhsa_user_sgpr_count 2
  .amdhsa_user_sgpr_kernarg_segment_ptr 1
  .amdhsa_system_sgpr_workgroup_id_x 1
  .amdhsa_float_denorm_mode_32 3
.end_amdhsa_kernel
"""
    return out

if __name__ == '__main__':
    kw = eval('dict(' + (sys.argv[2] if len(sys.argv) > 2 else '') + ')')
    open(sys.argv[1], 'w').write(gen(**kw))
```

```python
import sys, math, struct
from gen import NAME, HEADER, f2u, G, vr

UIN = 0
UIN_SZ = 46*8*1024
OIN = UIN + UIN_SZ
OIN_SZ = 256*512
YIN = OIN + OIN_SZ
YIN_SZ = 80*2048
FIN = YIN + YIN_SZ
FIN_SZ = 80*2048
MLIN = FIN + FIN_SZ
MLIN_SZ = 64*128
EPOCH = MLIN + MLIN_SZ
WS_USED = EPOCH + 128
STAMP = 4 << 20
BIG = 0x7ffff000

L_QP = 0
L_MLW = 1024
L_FAC = L_MLW + 32
L_OP = L_FAC + 32
L_YP = L_OP + 2048
LDS_SZ = L_YP + 4096

def gen(NS=3, PCAP=6, WCAP=8, SCAP=6, VCAP=6, VEND=16, VSW=6, rot=1, diag=False, wnt=' nt', mimic=True, hfirst=False, kvmod=' nt',
        spin=1<<17, abl='', UCAP=20):
    R = NS * 16
    g = G()
    DM = 'row_mask:0xf'
    def stamp(idx):
        if diag:
            g(f's_memrealtime s[76:77]')
            g('s_waitcnt lgkmcnt(0)')
            g(f's_mov_b32 s{80+idx}, s76')
    def stamp_flush():
        if diag:
            g('s_lshl_b32 s76, s2, 3')
            g('s_add_u32 s76, s76, s3')
            g('s_lshl_b32 s76, s76, 6')
            g(f's_add_u32 s76, s76, {STAMP}')
            g('s_mov_b64 exec, 1')
            for q in range(4):
                for r in range(4):
                    g(f'v_mov_b32 v{4+r}, s{80+4*q+r}')
                g('v_mov_b32 v8, 0')
                g(f'buffer_store_dwordx4 v[4:7], v8, s[72:75], s76 offen offset:{16*q}')
                g('s_nop 1')
            g('s_waitcnt vmcnt(0)')
    def srd(d, lo, hi, size):
        g(f's_mov_b32 s{d}, s{lo}')
        g(f's_mov_b32 s{d+1}, s{hi}')
        g(f's_mov_b32 s{d+2}, {size}')
        g(f's_mov_b32 s{d+3}, 0x20000')
    def masks():
        g('v_and_b32 v2, 1, v0')
        g('v_lshlrev_b32 v2, 4, v2')
        g('v_mov_b32 v3, 0xffff')
        g('v_lshlrev_b32 v3, v2, v3')
        g('v_bfe_u32 v2, v0, 1, 2')
        for t in range(4):
            g(f'v_cmp_eq_u32 vcc, {t}, v2')
            g('s_nop 1')
            g(f'v_cndmask_b32 v{6+t}, 0, v3, vcc')
    lab = [0]
    def poll_tail(okl, againl, sleep):
        g('s_sub_u32 s12, s12, 1')
        g(f's_cbranch_scc1 {okl}')
        if sleep:
            g(f's_cbranch_vccz {okl}')
            g(f's_sleep {sleep}')
            g(f's_branch {againl}')
        else:
            g(f's_cbranch_vccnz {againl}')
        g.label(okl)

    def tag(a, n=4):
        for r in range(n):
            g(f'v_and_or_b32 v{a+r}, v{a+r}, s60, v92')
    def untag(a, n, t):
        for r in range(n):
            g(f'v_xor_b32 v{a+r}, s43, v{a+r}')
        g(f'v_or3_b32 v{t}, v{a}, v{a+1}, v{a+2}')
        for e in range(3, n-1, 2):
            g(f'v_or3_b32 v{t}, v{t}, v{a+e}, v{a+e+1}')
        g(f'v_or_b32 v{t}, v{t}, v{a+n-1}')
        g(f'v_and_b32 v{t}, 0xff, v{t}')
        g(f'v_cmp_ne_u32 vcc, 0, v{t}')
    g('s_cmp_ge_u32 s2, 256')
    g('s_cbranch_scc1 L_exit')
    if diag:
        g('s_memrealtime s[78:79]')
    g('s_load_dwordx16 s[16:31], s[0:1], 0')
    g('s_load_dwordx8 s[32:39], s[0:1], 64')
    g('s_load_dwordx2 s[40:41], s[0:1], 96')
    g('v_lshrrev_b32 v1, 6, v0')
    g('v_and_b32 v0, 63, v0')
    g('v_readfirstlane_b32 s3, v1')
    g('s_and_b32 s4, s2, 7')
    g('s_lshr_b32 s5, s2, 3')
    g('s_lshr_b32 s6, s5, 3')
    g('s_lshl_b32 s7, s4, 2')
    g('s_add_u32 s6, s6, s7')
    g('s_bfe_u32 s7, s5, 0x10002')
    g('s_and_b32 s8, s5, 3')
    g('s_and_b32 s5, s5, 7')
    g('s_lshl_b32 s9, s7, 5')
    g('s_add_u32 s9, s9, s6')
    g('s_and_b32 s10, s3, 3')
    if diag:
        for i in range(16):
            g(f's_mov_b32 s{80+i}, 0')
    g('s_cmp_ge_u32 s3, 4')
    g('s_cbranch_scc%d L_helper' % (0 if hfirst else 1))

    RB = 64
    def slot(k, s): return RB + 4*(16*k + s)
    g('v_lshlrev_b32 v1, 4, v0')
    g('s_lshl_b32 s13, s8, 2')
    g('s_add_u32 s13, s13, s10')
    g('s_lshl_b32 s13, s13, 12')
    if rot:
        g(f's_mul_i32 s14, s9, {rot*65536}')
        g('s_add_u32 s13, s13, s14')
        g('s_and_b32 s13, s13, 0x1fffff')
    g('s_lshl_b32 s11, s9, 21')
    g('s_mov_b32 s46, 0x200000')
    g('s_mov_b32 s47, 0x20000')
    g('s_waitcnt lgkmcnt(0)')
    g('s_add_u32 s44, s18, s11')
    g('s_addc_u32 s45, s19, 0')
    def issue_piece(k, pc, cap, first=10**9, cap2=None):
        for i in range(4):
            r = slot(k, 4*pc+i)
            if first + i >= cap:
                if cap2 is not None:
                    lab[0] += 1
                    g(f's_cbranch_scc1 L_c{lab[0]}')
                    g(f's_waitcnt vmcnt({cap-1})')
                    g.label(f'L_c{lab[0]}')
                    if cap2 < 16: g(f's_waitcnt vmcnt({cap2-1})')
                else:
                    g(f's_waitcnt vmcnt({cap-1})')
            g(f'buffer_load_dwordx4 {vr(r)}, v1, s[44:47], s13 offen offset:{1024*i}{kvmod}')
        g('s_add_u32 s13, s13, 0x10000')
        g('s_and_b32 s13, s13, 0x1fffff')
    issue_piece(0, 0, PCAP, 0)
    g('s_add_u32 s48, s20, s11')
    g('s_addc_u32 s49, s21, 0')
    if diag:
        srd(72, 40, 41, STAMP + (1<<20))
        g('s_mov_b32 s80, s78')
    masks()
    g(f's_mov_b32 s14, {NS}')
    g('s_mov_b32 s50, 0xcccccccc')
    g('s_mov_b32 s51, 0xcccccccc')
    g('s_mov_b32 s52, 0xaaaaaaaa')
    g('s_mov_b32 s53, 0xaaaaaaaa')
    g('v_and_b32 v28, 15, v0')
    g('v_lshlrev_b32 v28, 5, v28')
    for k in range(NS):
        for pc in range(4):
            if k or pc:
                issue_piece(k, pc, PCAP, 16*k+4*pc)
    stamp(1)
    g('s_barrier')
    stamp(2)
    for u in range(2):
        g(f'ds_read_b128 {vr(32+8*u)}, v28 offset:{L_QP+512*u}')
        g(f'ds_read_b128 {vr(36+8*u)}, v28 offset:{L_QP+512*u+16}')
    g('s_waitcnt lgkmcnt(0)')
    for e in range(8):
        g(f'v_add_f32 v{32+e}, v{32+e}, v{40+e}')
    for t in range(4):
        g(f'v_cvt_pk_bf16_f32 v{2+t}, v{32+2*t}, v{33+2*t}')

    def blk_stamp():
        if diag:
            g('s_memrealtime s[76:77]')
            g('s_mov_b32 m0, s14')
            g('s_waitcnt lgkmcnt(0)')
            g('v_writelane_b32 v63, s76, m0')
    def kblock(k):
        blk_stamp()
        g('s_cmp_eq_u32 s14, 8')
        g('s_cselect_b32 s44, s48, s44')
        g('s_cselect_b32 s45, s49, s45')
        g('s_cmp_le_u32 s14, 8')
        g('s_cselect_b64 vcc, -1, 0')
        g('s_add_u32 s14, s14, 1')
        for pc in range(4):
            for t in range(4):
                for i in range(4):
                    r = slot(k, 4*pc+i) + t
                    if t == 0:
                        g(f'v_dot2_f32_bf16 v{18+i}, v{r}, v2, 0')
                    else:
                        g(f'v_dot2c_f32_bf16 v{18+i}, v{r}, v{2+t}')
            g('s_nop 2')
            g(f'v_add_f32_dpp v22, v18, v18 row_ror:8 {DM} bank_mask:0x3')
            g(f'v_add_f32_dpp v23, v20, v20 row_ror:8 {DM} bank_mask:0x3')
            g(f'v_add_f32_dpp v22, v19, v19 row_ror:8 {DM} bank_mask:0xc')
            g(f'v_add_f32_dpp v23, v21, v21 row_ror:8 {DM} bank_mask:0xc')
            g('s_nop 0')
            g(f'v_add_f32_dpp v{24+pc}, v22, v22 row_shl:4 {DM} bank_mask:0x5')
            g(f'v_add_f32_dpp v{24+pc}, v23, v23 row_shr:4 {DM} bank_mask:0xa')
            g(f's_cbranch_vccz L_kni{k}_{pc}')
            issue_piece(k, pc, SCAP)
            g.label(f'L_kni{k}_{pc}')
        for e in range(7):
            g(f'v_mov_b32 v{10+e}, v{11+e}')
        for pc in range(4):
            g(f'v_add_f32_dpp v{24+pc}, v{24+pc}, v{24+pc} quad_perm:[2,3,0,1] {DM} bank_mask:0xf')
        g('v_cndmask_b32 v24, v24, v25, s[50:51]')
        g('v_cndmask_b32 v26, v26, v27, s[50:51]')
        g('s_nop 0')
        g(f'v_add_f32_dpp v24, v24, v24 quad_perm:[1,0,3,2] {DM} bank_mask:0xf')
        g(f'v_add_f32_dpp v26, v26, v26 quad_perm:[1,0,3,2] {DM} bank_mask:0xf')
        g('v_cndmask_b32 v17, v24, v26, s[52:53]')
    def pi(pc, i): return 8*(i & 1) + 4*(i >> 1) + 2*(pc & 1) + (pc >> 1)
    def vblock(k):
        blk_stamp()
        g(f's_cmp_lt_u32 s14, {15+NS}')
        g('s_cselect_b64 vcc, -1, 0')
        g('s_add_u32 s14, s14, 1')
        for pc in range(4):
            for i in range(4):
                for t in range(4):
                    g(f'v_and_b32_dpp v{36+4*i+t}, v10, v{6+t} row_newbcast:{pi(pc,i)} {DM} bank_mask:0xf')
            g('s_waitcnt vmcnt(12)')
            if pc:
                g(f's_cbranch_vccnz L_vgo{pc}')
                g(f's_waitcnt vmcnt({12-4*pc})')
                g.label(f'L_vgo{pc}')
            else:
                g('s_nop 0')
            for i in range(4):
                r = slot(k, 4*pc+i)
                g(f'v_mfma_f32_16x16x32_bf16 v[32:35], {vr(36+4*i)}, {vr(r)}, v[32:35]')
            g(f's_cbranch_vccz L_vni{pc}')
            if VEND != VCAP:
                g(f's_cmp_gt_u32 s14, {8+NS+VSW}')
                issue_piece(k, pc, VCAP, cap2=VEND)
            else:
                issue_piece(k, pc, VCAP)
            g.label(f'L_vni{pc}')
        for e in range(7):
            g(f'v_mov_b32 v{10+e}, v{11+e}')

    g.label('L_kloop')
    for k in range(NS):
        kblock(k)
        if k == (7 % NS):
            g(f's_cmp_eq_u32 s14, {8+NS}')
            if k == NS-1:
                g('s_cbranch_scc0 L_kloop')
            else:
                g('s_cbranch_scc1 L_soft')
    if (7 % NS) != NS-1:
        g('s_branch L_kloop')
    g.label('L_soft')
    stamp(3)
    scale = 128 ** -0.5
    log2e = math.log2(math.e)
    if mimic:
        g(f's_mov_b32 s54, 0x{f2u(scale):08x}')
        g(f's_mov_b32 s55, 0x{f2u(log2e):08x}')
        for e in range(8):
            g(f'v_cvt_pk_bf16_f32 v{10+e}, 0, v{10+e}')
        for e in range(8):
            g(f'v_mul_f32 v{10+e}, s54, v{10+e}')
        for e in range(8):
            g(f'v_cvt_pk_bf16_f32 v{10+e}, 0, v{10+e}')
        for e in range(8):
            g(f'v_mul_f32 v{10+e}, s55, v{10+e}')
    else:
        g(f's_mov_b32 s55, 0x{f2u(scale*log2e):08x}')
        for e in range(8):
            g(f'v_mul_f32 v{10+e}, s55, v{10+e}')
    def rowswaps(op, r, t):
        for sw in ('v_permlane16_swap_b32', 'v_permlane32_swap_b32'):
            g(f'v_mov_b32 v{t}, v{r}')
            g('s_nop 1')
            g(f'{sw} v{r}, v{t}')
            g('s_nop 1')
            g(f'{op} v{r}, v{r}, v{t}')
    def allreduce(op, r, t):
        g('s_nop 1')
        for m in ('row_ror:8', 'row_ror:4', 'row_ror:2', 'row_ror:1'):
            g(f'{op}_dpp v{r}, v{r}, v{r} {m} {DM} bank_mask:0xf')
            g('s_nop 1')
        rowswaps(op, r, t)
    g('v_max3_f32 v18, v10, v11, v12')
    g('v_max3_f32 v19, v13, v14, v15')
    g('v_max3_f32 v18, v18, v16, v17')
    g('v_max_f32 v18, v18, v19')
    allreduce('v_max_f32', 18, 20)
    for e in range(8):
        g(f'v_sub_f32 v{10+e}, v{10+e}, v18')
    for e in range(8):
        g(f'v_exp_f32 v{10+e}, v{10+e}')
    g('s_nop 0')
    g('v_add_f32 v19, v10, v11')
    g('v_add_f32 v20, v12, v13')
    g('v_add_f32 v21, v14, v15')
    g('v_add_f32 v22, v16, v17')
    g('v_add_f32 v19, v19, v20')
    g('v_add_f32 v21, v21, v22')
    g('v_add_f32 v19, v19, v21')
    allreduce('v_add_f32', 19, 20)
    for e in range(8):
        g(f'v_cvt_pk_bf16_f32 v{10+e}, v{10+e}, v{10+e}')
    g('v_min_u32 v18, -2, v18')
    g('v_min_u32 v19, -2, v19')
    g('s_lshl_b32 s15, s10, 3')
    g('v_mov_b32 v20, s15')
    g(f'ds_write_b64 v20, v[18:19] offset:{L_MLW}')
    for r in range(4):
        g(f'v_mov_b32 v{32+r}, 0')
    g('v_and_b32 v29, 16, v0')
    g('v_add_u32 v28, v28, v29')
    g('s_lshl_b32 s15, s10, 9')
    g('v_add_u32 v28, s15, v28')
    g.label('L_vloop')
    vblock(8 % NS)
    g('s_cbranch_vccnz L_vloop')
    g(f'ds_write_b128 v28, v[32:35] offset:{L_OP}')
    g('s_waitcnt lgkmcnt(0)')
    stamp(4)
    g('s_barrier')
    if diag:
        g('s_lshl_b32 s76, s2, 3')
        g('s_add_u32 s76, s76, s3')
        g('s_lshl_b32 s76, s76, 8')
        g(f's_add_u32 s76, s76, {STAMP + (1<<18)}')
        g('v_lshlrev_b32 v8, 2, v0')
        g('buffer_store_dword v63, v8, s[72:75], s76 offen')
    stamp_flush()
    g('s_endpgm')

    g.label('L_helper')
    g('v_lshrrev_b32 v3, 4, v0')
    g('v_and_b32 v4, 15, v0')
    g('v_bfe_u32 v5, v0, 3, 1')
    g('s_lshr_b32 s13, s2, 3')
    g('s_add_u32 s14, s13, 32')
    g('s_cmp_eq_u32 s10, 0')
    g('s_cselect_b32 s64, s6, s14')
    g('s_cselect_b32 s65, s5, s4')
    g('s_movk_i32 s14, 3456')
    g('s_cselect_b32 s66, 0x2000, s14')
    g('s_cselect_b32 s67, s6, s13')
    g('s_lshl_b32 s67, s67, 8')
    g('s_cmp_lt_u32 s2, 112')
    g('s_cselect_b32 s68, 2, 1')
    g('s_cmp_lt_u32 s10, s68')
    g('s_cselect_b32 s68, 1, 0')
    g('v_and_b32 v1, 7, v0')
    g('v_lshl_add_u32 v1, v3, 3, v1')
    g('v_mul_u32_u24 v1, 40, v1')
    g('v_mul_u32_u24 v20, 1280, v5')
    g('v_add_u32 v1, v1, v20')
    g('s_lshl_b32 s11, s65, 2')
    g('v_add_u32 v2, s11, v3')
    g('v_mul_u32_u24 v2, 40, v2')
    g('v_add_u32 v2, v2, v20')
    g('s_mul_i32 s11, s66, 20')
    g('v_mul_u32_u24 v21, s11, v3')
    g('v_lshl_add_u32 v21, v4, 4, v21')
    g('s_cmp_eq_u32 s64, 45')
    g('s_cselect_b32 s11, 8, 16')
    g('v_cmp_gt_u32 vcc, s11, v4')
    g(f'v_mov_b32 v22, 0x{BIG:x}')
    g('s_mul_i32 s12, s65, 80')
    g('v_cndmask_b32 v21, v22, v21, vcc')
    g('s_mul_i32 s12, s12, s66')
    g('s_add_u32 s12, s12, s67')
    g('s_mul_i32 s50, s66, 640')
    g('s_mov_b32 s51, 0x20000')
    g('s_movk_i32 s46, 2560')
    g('s_mov_b32 s47, 0x20000')
    g('s_cmp_eq_u32 s10, 0')
    g('s_waitcnt lgkmcnt(0)')
    g(f's_load_dword s42, s[40:41], {EPOCH}')
    g('s_mov_b32 s44, s16')
    g('s_mov_b32 s45, s17')
    g('s_cselect_b32 s48, s22, s28')
    g('s_cselect_b32 s49, s23, s29')
    if diag:
        srd(72, 40, 41, STAMP + (1<<20))
        g('s_mov_b32 s80, s78')
    if 'h' in abl:
        stamp_flush()
        g('s_endpgm')
    g('s_cmp_eq_u32 s68, 0')
    g('s_cbranch_scc1 L_noload')
    XS, XC, WB = 30, 40, 96
    for base, vo in ((XS, 'v1'), (XC, 'v2')):
        g(f'buffer_load_dwordx4 {vr(base)}, {vo}, s[44:47], 0 offen')
        g(f'buffer_load_dwordx4 {vr(base+4)}, {vo}, s[44:47], 0 offen offset:16')
        g(f'buffer_load_dwordx2 {vr(base+8,2)}, {vo}, s[44:47], 0 offen offset:32')
    for i in range(20):
        g(f'buffer_load_dwordx4 {vr(WB+4*i)}, v21, s[48:51], s12 offen{wnt}')
        if i < 19: g('s_add_u32 s12, s12, s66')
    g.label('L_noload')
    srd(52, 40, 41, WS_USED)
    masks()
    g('v_lshrrev_b32 v3, 4, v0')
    g('v_lshrrev_b32 v23, 5, v0')
    g('v_lshlrev_b32 v23, 9, v23')
    g('v_lshl_add_u32 v23, v4, 5, v23')
    g('v_and_b32 v24, 16, v0')
    g('v_add_u32 v23, v23, v24')
    g('v_lshrrev_b32 v25, 5, v0')
    g('v_mul_u32_u24 v25, 40, v25')
    g('v_lshrrev_b32 v26, 1, v4')
    g('v_add_u32 v25, v25, v26')
    g('v_lshlrev_b32 v25, 11, v25')
    g('v_and_b32 v26, 1, v0')
    g('v_lshl_add_u32 v25, v26, 5, v25')
    g('v_add_u32 v25, v25, v24')
    g('v_cmp_gt_u32 vcc, 10, v4')
    g(f'v_mov_b32 v22, 0x{BIG:x}')
    g(f's_mul_i32 s69, s5, {5*2048}')
    g('v_cndmask_b32 v27, v22, v25, vcc')
    g('s_lshl_b32 s11, s6, 6')
    g('s_add_u32 s69, s69, s11')
    g(f's_add_u32 s69, s69, {YIN}')
    g('v_cmp_gt_u32 vcc, 32, v0')
    g('v_lshlrev_b32 v29, 4, v0')
    g('s_lshl_b32 s70, s6, 3')
    g('v_cndmask_b32 v28, v22, v29, vcc')
    g('s_add_u32 s70, s70, s5')
    g('s_lshl_b32 s70, s70, 9')
    g(f's_add_u32 s70, s70, {OIN}')
    g('v_mov_b32 v88, v22')
    g('s_lshl_b32 s71, s9, 7')
    g(f's_add_u32 s71, s71, {MLIN}')
    g('s_sub_u32 s11, s2, 112')
    g('s_mul_i32 s56, s11, 13108')
    g('s_lshr_b32 s56, s56, 16')
    g('s_mul_i32 s57, s56, 5')
    g('s_sub_u32 s57, s11, s57')
    g('s_lshl_b32 s58, s57, 14')
    g('s_lshl_b32 s11, s56, 6')
    g('s_add_u32 s58, s58, s11')
    g(f's_add_u32 s58, s58, {FIN}')
    g('s_waitcnt lgkmcnt(0)')
    g('s_add_u32 s42, s42, 1')
    g('s_and_b32 s43, s42, 0xff')
    g('v_mov_b32 v92, s43')
    g('s_movk_i32 s60, 0xff00')
    g('s_cmp_eq_u32 s68, 0')
    g('s_cbranch_scc0 L_unit')
    g('s_cmp_eq_u32 s10, 2')
    g('s_cbranch_scc0 L_bar1')
    g('v_mov_b32 v32, -1')
    g('v_lshlrev_b32 v39, 2, v0')
    g('v_and_b32 v39, 31, v39')
    g(f'ds_write_b32 v39, v32 offset:{L_MLW}')
    g('s_waitcnt lgkmcnt(0)')
    g('s_branch L_bar1')

    g.label('L_unit')
    g('s_waitcnt vmcnt(23)')
    stamp(1)
    U = 50
    for k in range(10):
        g(f'v_lshlrev_b32 v{U+2*k}, 16, v{XS+k}')
        g(f'v_and_b32 v{U+2*k+1}, 0xffff0000, v{XS+k}')
    g(f'v_pk_add_f32 v[70:71], v[{U}:{U+1}], v[{U+2}:{U+3}]')
    for k in range(2, 10):
        g(f'v_pk_add_f32 v[70:71], v[70:71], v[{U+2*k}:{U+2*k+1}]')
    g('v_add_f32 v70, v70, v71')
    def red_batch(r, t):
        for m in ('row_half_mirror', 'quad_perm:[2,3,0,1]', 'quad_perm:[1,0,3,2]'):
            g('s_nop 1')
            g(f'v_add_f32_dpp v{r}, v{r}, v{r} {m} {DM} bank_mask:0xf')
        rowswaps('v_add_f32', r, t)
    red_batch(70, 71)
    g(f's_mov_b32 s11, 0x{f2u(1.0/640):08x}')
    g('v_mul_f32 v70, s11, v70')
    for k in range(10):
        g(f'v_pk_add_f32 v[{U+2*k}:{U+2*k+1}], v[{U+2*k}:{U+2*k+1}], v[70:71] op_sel_hi:[1,0] neg_lo:[0,1] neg_hi:[0,1]')
    g(f'v_pk_mul_f32 v[72:73], v[{U}:{U+1}], v[{U}:{U+1}]')
    for k in range(1, 10):
        g(f'v_pk_fma_f32 v[72:73], v[{U+2*k}:{U+2*k+1}], v[{U+2*k}:{U+2*k+1}], v[72:73]')
    g('v_add_f32 v72, v72, v73')
    red_batch(72, 73)
    g('v_mul_f32 v72, s11, v72')
    g('v_cvt_pk_bf16_f32 v72, 0, v72')
    g(f'v_add_f32 v72, 0x{f2u(1e-5):08x}, v72')
    g('v_cvt_pk_bf16_f32 v72, 0, v72')
    g('v_sqrt_f32 v72, v72')
    g('v_cvt_pk_bf16_f32 v70, 0, v70')
    g('v_cvt_pk_bf16_f32 v72, 0, v72')
    g('v_rcp_f32 v74, v72')
    g('s_waitcnt vmcnt(20)')
    for k in range(10):
        g(f'v_lshlrev_b32 v{U+2*k}, 16, v{XC+k}')
        g(f'v_and_b32 v{U+2*k+1}, 0xffff0000, v{XC+k}')
    for k in range(10):
        g(f'v_pk_add_f32 v[{U+2*k}:{U+2*k+1}], v[{U+2*k}:{U+2*k+1}], v[70:71] op_sel_hi:[1,0] neg_lo:[0,1] neg_hi:[0,1]')
    for e in range(20):
        g(f'v_cvt_pk_bf16_f32 v{U+e}, 0, v{U+e}')
    for k in range(10):
        p = f'v[{U+2*k}:{U+2*k+1}]'
        g(f'v_pk_mul_f32 v[76:77], {p}, v[74:75] op_sel_hi:[1,0]')
        g(f'v_pk_fma_f32 {p}, v[76:77], v[72:73], {p} op_sel_hi:[1,0,1] neg_lo:[1,0,0] neg_hi:[1,0,0]')
        g(f'v_pk_fma_f32 {p}, {p}, v[74:75], v[76:77] op_sel_hi:[1,0,1]')
    for e in range(20):
        g(f'v_cvt_pk_bf16_f32 v{U+e}, v{U+e}, v{U+e}')
    stamp(2)
    for i in range(20):
        a = 36 + 4*(i & 1)
        for t in range(4):
            g(f'v_and_b32 v{a+t}, v{U+i}, v{6+t}')
        g(f's_waitcnt vmcnt({19-i})')
        g('s_nop 0')
        c_ = '0' if i == 0 else 'v[32:35]'
        g(f'v_mfma_f32_16x16x32_bf16 v[32:35], {vr(a)}, {vr(WB+4*i)}, {c_}')
    g('s_lshl_b32 s13, s64, 3')
    g('s_add_u32 s13, s13, s65')
    g('s_lshl_b32 s13, s13, 10')
    g('s_nop 4')
    tag(32)
    g('buffer_store_dwordx4 v[32:35], v23, s[52:55], s13 offen sc1')
    stamp(3)
    g('s_cmp_eq_u32 s10, 0')
    g('s_cbranch_scc0 L_bar1')
    g('v_lshrrev_b32 v36, 5, v0')
    g('v_lshlrev_b32 v36, 10, v36')
    g('v_and_b32 v37, 31, v0')
    g('v_lshl_add_u32 v36, v37, 4, v36')
    g('s_lshl_b32 s13, s6, 13')
    g('s_lshl_b32 s11, s7, 9')
    g('s_add_u32 s13, s13, s11')
    g('s_add_u32 s14, s13, 4096')
    g(f's_mov_b32 s12, {spin}')
    g.label('L_qg')
    for i in range(4):
        g(f'buffer_load_dwordx4 {vr(40+4*i)}, v36, s[52:55], {"s13" if i < 2 else "s14"} offen offset:{2048*(i&1)} sc1')
    g('s_waitcnt vmcnt(0)')
    untag(40, 16, 37)
    poll_tail('L_qg_ok', 'L_qg', 0)
    for r in range(4):
        g(f'v_add_f32 v{40+r}, v{40+r}, v{44+r}')
        g(f'v_add_f32 v{48+r}, v{48+r}, v{52+r}')
    for r in range(4):
        g(f'v_add_f32 v{40+r}, v{40+r}, v{48+r}')
    g(f'ds_write_b128 v29, v[40:43] offset:{L_QP}')
    g('s_waitcnt lgkmcnt(0)')
    g.label('L_bar1')
    stamp(4)
    g('s_barrier')
    stamp(5)
    WOB = 192
    g(f's_mul_i32 s11, s6, {128*1280}')
    g('s_add_u32 s48, s24, s11')
    g('s_addc_u32 s49, s25, 0')
    g(f's_mov_b32 s50, {128*1280}')
    g('s_mov_b32 s51, 0x20000')
    g(f'v_mul_u32_u24 v20, {8*1280}, v3')
    g('v_lshl_add_u32 v20, v4, 4, v20')
    g('v_cmp_gt_u32 vcc, 10, v4')
    g(f's_mul_i32 s11, s10, {32*1280}')
    g('s_mul_i32 s12, s5, 160')
    g('v_cndmask_b32 v20, v22, v20, vcc')
    g('s_add_u32 s11, s11, s12')
    for rg in range(8):
        if rg and rg % 3 == 0:
            g(f's_add_u32 s11, s11, {3*1280}')
        if rg >= WCAP: g(f's_waitcnt vmcnt({WCAP-1})')
        g(f'buffer_load_dwordx4 {vr(WOB+4*rg)}, v20, s[48:51], s11 offen offset:{1280*(rg%3)}{wnt}')
    g('s_cmp_eq_u32 s10, 2')
    g('s_cbranch_scc1 L_ml')
    g('s_sub_u32 s11, s2, 112')
    g('s_cmp_lt_u32 s11, 135')
    g('s_cselect_b32 s11, 1, 0')
    g('s_cmp_eq_u32 s10, 1')
    g('s_cselect_b32 s13, s11, 0')
    g('s_cmp_ge_u32 s2, 176')
    g('s_cselect_b32 s11, 1, 0')
    g('s_cmp_eq_u32 s10, 3')
    g('s_cselect_b32 s59, s11, 0')
    g('s_or_b32 s13, s13, s59')
    g('s_cmp_eq_u32 s13, 0')
    g('s_cbranch_scc1 L_bar2')
    g('s_cmp_eq_u32 s10, 3')
    g('s_cbranch_scc1 L_cons')
    srd(44, 32, 33, 1728*1280)
    srd(48, 30, 31, 3456)
    g(f'v_mul_u32_u24 v20, {16*1280}, v3')
    g('v_lshl_add_u32 v20, v4, 4, v20')
    g(f's_mul_i32 s11, s56, {64*1280}')
    g('s_lshl_b32 s12, s57, 8')
    g('s_add_u32 s11, s11, s12')
    for rg in range(16):
        if rg and rg % 3 == 0:
            g(f's_add_u32 s11, s11, {3*1280}')
        if rg >= 4: g('s_waitcnt vmcnt(3)')
        g(f'buffer_load_dwordx4 {vr(WB+4*rg)}, v20, s[44:47], s11 offen offset:{1280*(rg%3)}{wnt}')
    g('v_lshlrev_b32 v21, 5, v3')
    g('s_lshl_b32 s11, s56, 7')
    g('buffer_load_dwordx4 v[80:83], v21, s[48:51], s11 offen')
    g('buffer_load_dwordx4 v[84:87], v21, s[48:51], s11 offen offset:16')
    g('v_and_b32 v36, 7, v0')
    g('v_lshlrev_b32 v36, 10, v36')
    g('v_lshl_add_u32 v36, v5, 9, v36')
    g('v_lshl_add_u32 v36, v3, 6, v36')
    g('s_lshr_b32 s13, s56, 1')
    g('s_add_u32 s13, s13, 32')
    g('s_lshl_b32 s13, s13, 13')
    g('s_and_b32 s11, s56, 1')
    g('s_lshl_b32 s11, s11, 8')
    g('s_add_u32 s13, s13, s11')
    g(f's_mov_b32 s12, {spin}')
    g.label('L_hg')
    for i in range(4):
        g(f'buffer_load_dwordx4 {vr(48+4*i)}, v36, s[52:55], s13 offen offset:{16*i} sc1')
    g('s_waitcnt vmcnt(0)')
    untag(48, 16, 37)
    poll_tail('L_hg_ok', 'L_hg', 8)
    for m in ('row_half_mirror', 'quad_perm:[2,3,0,1]', 'quad_perm:[1,0,3,2]'):
        for e in range(16):
            g(f'v_add_f32_dpp v{48+e}, v{48+e}, v{48+e} {m} {DM} bank_mask:0xf')
    for k in range(8):
        g(f'v_lshlrev_b32 v{64+2*k}, 16, v{80+k}')
        g(f'v_and_b32 v{65+2*k}, 0xffff0000, v{80+k}')
    for e in range(16):
        g(f'v_cvt_pk_bf16_f32 v{48+e}, 0, v{48+e}')
        g(f'v_add_f32 v{48+e}, v{48+e}, v{64+e}')
        g(f'v_cvt_pk_bf16_f32 v{48+e}, 0, v{48+e}')
        g(f'v_cmp_lt_f32 vcc, 0, v{48+e}')
        g('s_nop 1')
        g(f'v_cndmask_b32 v{48+e}, 0, v{48+e}, vcc')
        g(f'v_mul_f32 v{48+e}, v{48+e}, v{48+e}')
        g(f'v_cvt_pk_bf16_f32 v{48+e}, v{48+e}, v{48+e}')
    for i in range(16):
        a = 36 + 4*(i & 1)
        for t in range(4):
            g(f'v_and_b32 v{a+t}, v{48+i}, v{6+t}')
        g('s_nop 1')
        c_ = '0' if i == 0 else 'v[32:35]'
        g(f'v_mfma_f32_16x16x32_bf16 v[32:35], {vr(a)}, {vr(WB+4*i)}, {c_}')
    g('s_nop 7')
    tag(32)
    g('buffer_store_dwordx4 v[32:35], v25, s[52:55], s58 offen sc1')
    g('s_branch L_bar2')

    g.label('L_ml')
    g('s_mov_b32 s59, 0')
    g('v_and_b32 v21, 3, v0')
    g('v_lshlrev_b32 v21, 3, v21')
    g(f's_mov_b32 s12, {spin}')
    g.label('L_mlw')
    g(f'ds_read_b64 v[30:31], v21 offset:{L_MLW}')
    g('s_waitcnt lgkmcnt(0)')
    g('v_max_u32 v36, v30, v31')
    g('v_cmp_eq_u32 vcc, -1, v36')
    poll_tail('L_mlw_ok', 'L_mlw', 8)
    def quadred(op, r):
        g('s_nop 1')
        g(f'{op}_dpp v{r}, v{r}, v{r} quad_perm:[2,3,0,1] {DM} bank_mask:0xf')
        g('s_nop 1')
        g(f'{op}_dpp v{r}, v{r}, v{r} quad_perm:[1,0,3,2] {DM} bank_mask:0xf')
    g('v_mov_b32 v32, v30')
    quadred('v_max_f32', 32)
    g('v_sub_f32 v33, v30, v32')
    g('v_exp_f32 v33, v33')
    g('s_nop 0')
    g('v_mul_f32 v33, v33, v31')
    quadred('v_add_f32', 33)
    g('v_mov_b32 v40, v32')
    g('v_mov_b32 v41, s42')
    g('v_mov_b32 v42, v33')
    g('v_mov_b32 v43, s42')
    g('s_lshl_b32 s11, s8, 4')
    g('v_mov_b32 v36, s11')
    g('v_lshlrev_b32 v38, 1, v21')
    g('s_mov_b64 exec, 1')
    g('buffer_store_dwordx4 v[40:43], v36, s[52:55], s71 offen sc1')
    g('s_mov_b64 exec, -1')
    g(f's_mov_b32 s12, {spin}')
    g.label('L_mlg')
    g('buffer_load_dwordx4 v[44:47], v38, s[52:55], s71 offen sc1')
    g('s_waitcnt vmcnt(0)')
    g('v_xor_b32 v45, s42, v45')
    g('v_xor_b32 v47, s42, v47')
    g('v_or_b32 v36, v45, v47')
    g('v_cmp_ne_u32 vcc, 0, v36')
    poll_tail('L_mlg_ok', 'L_mlg', 16)
    g('v_mov_b32 v34, v44')
    g('v_mov_b32 v35, v46')
    g('v_mov_b32 v32, v34')
    quadred('v_max_f32', 32)
    g('v_sub_f32 v33, v34, v32')
    g('v_exp_f32 v33, v33')
    g('s_nop 0')
    g('v_mul_f32 v33, v33, v35')
    quadred('v_add_f32', 33)
    g('v_sub_f32 v30, v30, v32')
    g('v_exp_f32 v30, v30')
    g('v_rcp_f32 v33, v33')
    g('s_nop 0')
    g('v_mul_f32 v30, v30, v33')
    g('v_lshrrev_b32 v21, 1, v21')
    g(f'ds_write_b32 v21, v30 offset:{L_FAC}')
    g('s_waitcnt lgkmcnt(0)')
    g('s_branch L_bar2')

    g.label('L_cons')
    srd(44, 16, 17, 2560)
    srd(48, 34, 35, 1280)
    g('s_sub_u32 s15, s2, 176')
    g('v_and_b32 v88, 3, v0')
    g('v_lshl_add_u32 v88, v88, 2, v3')
    g('s_lshl_b32 s11, s15, 4')
    g('v_add_u32 v88, s11, v88')
    g('v_lshlrev_b32 v88, 1, v88')
    g('buffer_load_ushort v90, v88, s[44:47], 0 offen')
    g('s_cmp_ge_u32 s15, 40')
    g('s_cselect_b32 s11, 1280, 0')
    g('v_subrev_u32 v36, s11, v88')
    g('buffer_load_ushort v91, v36, s[48:51], 0 offen')
    g('v_cmp_gt_u32 vcc, 44, v0')
    g('s_lshl_b32 s13, s15, 11')
    g(f's_add_u32 s13, s13, {FIN}')
    g('v_cndmask_b32 v36, v22, v29, vcc')
    g('v_cndmask_b32 v38, v92, 0, vcc')
    g(f's_mov_b32 s12, {spin}')
    g.label('L_fg')
    g('buffer_load_dwordx4 v[40:43], v29, s[52:55], s13 offen sc1')
    g('buffer_load_dwordx4 v[44:47], v36, s[52:55], s13 offen offset:1024 sc1')
    g('s_waitcnt vmcnt(0)')
    for r in range(4):
        g(f'v_or_b32 v{44+r}, v{44+r}, v38')
    def chk8(a, t):
        untag(a, 8, t)
    chk8(40, 37)
    poll_tail('L_fg_ok', 'L_fg', 16)
    def red16(a):
        for r in range(4):
            g(f'v_add_f32 v{a+r}, v{a+r}, v{a+4+r}')
        for m in ('row_ror:4', 'row_ror:8'):
            for r in range(4):
                g(f'v_add_f32_dpp v{a+r}, v{a+r}, v{a+r} {m} {DM} bank_mask:0xf')
        g('s_nop 0')
        g(f'v_permlane16_swap_b32 v{a}, v{a+1}')
        g(f'v_permlane16_swap_b32 v{a+2}, v{a+3}')
        g('s_nop 0')
        g(f'v_add_f32 v{a}, v{a}, v{a+1}')
        g(f'v_add_f32 v{a+2}, v{a+2}, v{a+3}')
        g('s_nop 1')
        g(f'v_permlane32_swap_b32 v{a}, v{a+2}')
        g('s_nop 1')
        g(f'v_add_f32 v{a}, v{a}, v{a+2}')
    red16(40)
    g('v_cvt_pk_bf16_f32 v32, 0, v40')
    g('v_lshlrev_b32 v91, 16, v91')
    g('v_lshlrev_b32 v90, 16, v90')
    g('v_add_f32 v32, v32, v91')
    g('v_cvt_pk_bf16_f32 v32, 0, v32')
    g(f'v_mul_f32 v33, 0x{f2u(-log2e):08x}, v32')
    g('v_exp_f32 v33, v33')
    g('s_nop 0')
    g('v_add_f32 v33, 1.0, v33')
    g('v_rcp_f32 v33, v33')
    g('s_nop 0')
    g('v_mul_f32 v32, v32, v33')
    g('v_cvt_pk_bf16_f32 v91, 0, v32')

    g.label('L_bar2')
    srd(44, 36, 37, 2560)
    g('v_and_b32 v20, 3, v0')
    g('v_lshl_add_u32 v20, v5, 2, v20')
    g('v_lshlrev_b32 v20, 9, v20')
    g('v_lshl_add_u32 v20, v3, 5, v20')
    g('s_lshl_b32 s11, s10, 7')
    g('v_add_u32 v20, s11, v20')
    g('s_lshl_b32 s13, s6, 12')
    g(f's_add_u32 s13, s13, {OIN}')
    g('v_mov_b32 v21, 0')
    g('v_and_b32 v30, 0x1f0, v29')
    g('s_lshl_b32 s11, s10, 10')
    g('v_add_u32 v31, s11, v29')
    g('s_sub_u32 s15, s2, 176')
    g('s_lshl_b32 s15, s15, 11')
    g(f's_add_u32 s15, s15, {YIN}')
    g(f's_mov_b32 s12, {spin}')
    g('s_waitcnt vmcnt(0)')
    stamp(7)
    g('s_barrier')
    stamp(8)
    g('s_cmp_eq_u32 s10, 0')
    g('s_cbranch_scc0 L_og')
    g(f'ds_read_b128 v[64:67], v21 offset:{L_FAC}')
    for u in range(4):
        g(f'ds_read_b128 {vr(48+4*u)}, v30 offset:{L_OP+512*u}')
    g('s_waitcnt lgkmcnt(3)')
    for e in range(4):
        g(f'v_mul_f32 v{48+e}, v64, v{48+e}')
    for u in range(1, 4):
        g(f's_waitcnt lgkmcnt({3-u})')
        for e in range(4):
            g(f'v_fmac_f32 v{48+e}, v{64+u}, v{48+4*u+e}')
    tag(48)
    g('buffer_store_dwordx4 v[48:51], v28, s[52:55], s70 offen sc1')
    g.label('L_og')
    g('buffer_load_dwordx4 v[40:43], v20, s[52:55], s13 offen sc1')
    g('buffer_load_dwordx4 v[44:47], v20, s[52:55], s13 offen offset:16 sc1')
    g('s_waitcnt vmcnt(0)')
    chk8(40, 37)
    poll_tail('L_og_ok', 'L_og', 0)
    stamp(9)
    for m in ('quad_perm:[2,3,0,1]', 'quad_perm:[1,0,3,2]'):
        for e in range(8):
            g(f'v_add_f32_dpp v{40+e}, v{40+e}, v{40+e} {m} {DM} bank_mask:0xf')
    for e in range(8):
        g(f'v_cvt_pk_bf16_f32 v{40+e}, v{40+e}, v{40+e}')
    def buildA(a, rg):
        for t in range(4):
            g(f'v_and_b32 v{a+t}, v{40+rg}, v{6+t}')
    buildA(52, 0)
    for rg in range(8):
        a = 52 + 4*(rg & 1)
        if rg < 7:
            buildA(52 + 4*((rg+1) & 1), rg+1)
        else:
            g('s_nop 0')
        c_ = '0' if rg == 0 else 'v[32:35]'
        g(f'v_mfma_f32_16x16x32_bf16 v[32:35], {vr(a)}, {vr(WOB+4*rg)}, {c_}')
    g('s_nop 7')
    g(f'ds_write_b128 v31, v[32:35] offset:{L_YP}')
    g('s_waitcnt lgkmcnt(0)')
    g('s_barrier')
    g('s_cmp_eq_u32 s10, 3')
    g('s_cbranch_scc0 L_hend')
    for u in range(4):
        g(f'ds_read_b128 {vr(48+4*u)}, v29 offset:{L_YP+1024*u}')
    g('s_waitcnt lgkmcnt(2)')
    for r in range(4):
        g(f'v_add_f32 v{48+r}, v{48+r}, v{52+r}')
    g('s_waitcnt lgkmcnt(0)')
    for r in range(4):
        g(f'v_add_f32 v{56+r}, v{56+r}, v{60+r}')
    for r in range(4):
        g(f'v_add_f32 v{48+r}, v{48+r}, v{56+r}')
    tag(48)
    g('buffer_store_dwordx4 v[48:51], v27, s[52:55], s69 offen sc1')
    stamp(10)
    g('s_cmp_eq_u32 s59, 0')
    g('s_cbranch_scc1 L_hend')
    g(f's_mov_b32 s12, {spin}')
    g.label('L_yg')
    g('buffer_load_dwordx4 v[40:43], v29, s[52:55], s15 offen sc1')
    g('buffer_load_dwordx4 v[44:47], v29, s[52:55], s15 offen offset:1024 sc1')
    g('s_waitcnt vmcnt(0)')
    chk8(40, 37)
    poll_tail('L_yg_ok', 'L_yg', 0)
    red16(40)
    g('v_cvt_pk_bf16_f32 v32, 0, v40')
    g('v_mul_f32 v32, v32, v91')
    g('v_cvt_pk_bf16_f32 v32, 0, v32')
    g('v_add_f32 v32, v32, v90')
    g('v_cvt_pk_bf16_f32 v32, v32, v32')
    g('buffer_store_short v32, v88, s[44:47], 0 offen')
    g('s_cmp_eq_u32 s2, 176')
    g('s_cbranch_scc0 L_nobump')
    g('v_mov_b32 v33, s42')
    g(f's_mov_b32 s11, {EPOCH}')
    g('s_mov_b64 exec, 1')
    g('buffer_store_dword v33, v21, s[52:55], s11 offen sc1')
    g.label('L_nobump')
    stamp(11)
    g.label('L_hend')
    stamp_flush()
    g.label('L_exit')
    g('s_endpgm')

    out = HEADER
    out += f"; @launch grid=(256,1,1) block=(512,1,1) lds={LDS_SZ}\n"
    out += '.amdgcn_target "amdgcn-amd-amdhsa--gfx950"\n.text\n'
    out += f'.globl {NAME}_kernel\n.p2align 8\n.type {NAME}_kernel,@function\n{NAME}_kernel:\n'
    out += '\n'.join(g.L) + '\n'
    out += f""".section .rodata,"a"
.p2align 6
.amdhsa_kernel {NAME}_kernel
  .amdhsa_next_free_vgpr 256
  .amdhsa_next_free_sgpr 96
  .amdhsa_accum_offset 256
  .amdhsa_group_segment_fixed_size 0
  .amdhsa_kernarg_size 104
  .amdhsa_user_sgpr_count 2
  .amdhsa_user_sgpr_kernarg_segment_ptr 1
  .amdhsa_system_sgpr_workgroup_id_x 1
  .amdhsa_float_denorm_mode_32 3
.end_amdhsa_kernel
"""
    return out

if __name__ == '__main__':
    kw = eval('dict(' + (sys.argv[2] if len(sys.argv) > 2 else '') + ')')
    open(sys.argv[1], 'w').write(gen(**kw))
```

```python
import sys, math, struct
from gen import NAME, HEADER, f2u, G, vr

UIN = 0
UIN_SZ = 46*8*1024
OIN = UIN + UIN_SZ
OIN_SZ = 256*512
YIN = OIN + OIN_SZ
YIN_SZ = 80*2048
FIN = YIN + YIN_SZ
FIN_SZ = 80*2048
MLIN = FIN + FIN_SZ
MLIN_SZ = 64*128
EPOCH = MLIN + MLIN_SZ
WS_USED = EPOCH + 128
STAMP = 4 << 20
BIG = 0x7ffff000

L_QP = 0
L_MLW = 1024
L_FAC = L_MLW + 32
L_OP = L_FAC + 32
L_YP = L_OP + 2048
LDS_SZ = L_YP + 4096

def gen(NS=3, PCAP=6, WCAP=8, SCAP=6, VCAP=6, VEND=16, VSW=6, rot=1, diag=False, wnt=' nt', mimic=True, hfirst=False, kvmod=' nt',
        spin=1<<17, abl='', UCAP=20, dbgt=False):
    R = NS * 16
    g = G()
    DM = 'row_mask:0xf'
    def stamp(idx):
        if diag:
            g(f's_memrealtime s[76:77]')
            g('s_waitcnt lgkmcnt(0)')
            g(f's_mov_b32 s{80+idx}, s76')
    def stamp_flush():
        if diag:
            g('s_lshl_b32 s76, s2, 3')
            g('s_add_u32 s76, s76, s3')
            g('s_lshl_b32 s76, s76, 6')
            g(f's_add_u32 s76, s76, {STAMP}')
            g('s_mov_b64 exec, 1')
            for q in range(4):
                for r in range(4):
                    g(f'v_mov_b32 v{4+r}, s{80+4*q+r}')
                g('v_mov_b32 v8, 0')
                g(f'buffer_store_dwordx4 v[4:7], v8, s[72:75], s76 offen offset:{16*q}')
                g('s_nop 1')
            g('s_waitcnt vmcnt(0)')
    def srd(d, lo, hi, size):
        g(f's_mov_b32 s{d}, s{lo}')
        g(f's_mov_b32 s{d+1}, s{hi}')
        g(f's_mov_b32 s{d+2}, {size}')
        g(f's_mov_b32 s{d+3}, 0x20000')
    def masks():
        g('v_and_b32 v2, 1, v0')
        g('v_lshlrev_b32 v2, 4, v2')
        g('v_mov_b32 v3, 0xffff')
        g('v_lshlrev_b32 v3, v2, v3')
        g('v_bfe_u32 v2, v0, 1, 2')
        for t in range(4):
            g(f'v_cmp_eq_u32 vcc, {t}, v2')
            g('s_nop 1')
            g(f'v_cndmask_b32 v{6+t}, 0, v3, vcc')
    lab = [0]
    def poll_tail(okl, againl, sleep):
        g('s_sub_u32 s12, s12, 1')
        g(f's_cbranch_scc1 {okl}')
        if sleep:
            g(f's_cbranch_vccz {okl}')
            g(f's_sleep {sleep}')
            g(f's_branch {againl}')
        else:
            g(f's_cbranch_vccnz {againl}')
        g.label(okl)

    def tag(a, n=4):
        for r in range(n):
            g(f'v_and_or_b32 v{a+r}, v{a+r}, s60, v92')
    def untag(a, n, t):
        for r in range(n):
            g(f'v_xor_b32 v{a+r}, s43, v{a+r}')
        g(f'v_or3_b32 v{t}, v{a}, v{a+1}, v{a+2}')
        for e in range(3, n-1, 2):
            g(f'v_or3_b32 v{t}, v{t}, v{a+e}, v{a+e+1}')
        g(f'v_or_b32 v{t}, v{t}, v{a+n-1}')
        g(f'v_and_b32 v{t}, 0xff, v{t}')
        g(f'v_cmp_ne_u32 vcc, 0, v{t}')
    g('s_cmp_ge_u32 s2, 256')
    g('s_cbranch_scc1 L_exit')
    if diag or dbgt:
        g('s_memrealtime s[78:79]')
    g('s_load_dwordx16 s[16:31], s[0:1], 0')
    g('s_load_dwordx8 s[32:39], s[0:1], 64')
    g('s_load_dwordx2 s[40:41], s[0:1], 96')
    g('v_lshrrev_b32 v1, 6, v0')
    g('v_and_b32 v0, 63, v0')
    g('v_readfirstlane_b32 s3, v1')
    g('s_and_b32 s4, s2, 7')
    g('s_lshr_b32 s5, s2, 3')
    g('s_lshr_b32 s6, s5, 3')
    g('s_lshl_b32 s7, s4, 2')
    g('s_add_u32 s6, s6, s7')
    g('s_bfe_u32 s7, s5, 0x10002')
    g('s_and_b32 s8, s5, 3')
    g('s_and_b32 s5, s5, 7')
    g('s_lshl_b32 s9, s7, 5')
    g('s_add_u32 s9, s9, s6')
    g('s_and_b32 s10, s3, 3')
    if diag:
        for i in range(16):
            g(f's_mov_b32 s{80+i}, 0')
    g('s_cmp_ge_u32 s3, 4')
    g('s_cbranch_scc%d L_helper' % (0 if hfirst else 1))

    RB = 64
    def slot(k, s): return RB + 4*(16*k + s)
    g('v_lshlrev_b32 v1, 4, v0')
    g('s_lshl_b32 s13, s8, 2')
    g('s_add_u32 s13, s13, s10')
    g('s_lshl_b32 s13, s13, 12')
    if rot:
        g(f's_mul_i32 s14, s9, {rot*65536}')
        g('s_add_u32 s13, s13, s14')
        g('s_and_b32 s13, s13, 0x1fffff')
    g('s_lshl_b32 s11, s9, 21')
    g('s_mov_b32 s46, 0x200000')
    g('s_mov_b32 s47, 0x20000')
    g('s_waitcnt lgkmcnt(0)')
    g('s_add_u32 s44, s18, s11')
    g('s_addc_u32 s45, s19, 0')
    def issue_piece(k, pc, cap, first=10**9, cap2=None):
        for i in range(4):
            r = slot(k, 4*pc+i)
            if first + i >= cap:
                if cap2 is not None:
                    lab[0] += 1
                    g(f's_cbranch_scc1 L_c{lab[0]}')
                    g(f's_waitcnt vmcnt({cap-1})')
                    g.label(f'L_c{lab[0]}')
                    if cap2 < 16: g(f's_waitcnt vmcnt({cap2-1})')
                else:
                    g(f's_waitcnt vmcnt({cap-1})')
            g(f'buffer_load_dwordx4 {vr(r)}, v1, s[44:47], s13 offen offset:{1024*i}{kvmod}')
        g('s_add_u32 s13, s13, 0x10000')
        g('s_and_b32 s13, s13, 0x1fffff')
    issue_piece(0, 0, PCAP, 0)
    g('s_add_u32 s48, s20, s11')
    g('s_addc_u32 s49, s21, 0')
    if diag:
        srd(72, 40, 41, STAMP + (1<<20))
        g('s_mov_b32 s80, s78')
    masks()
    g(f's_mov_b32 s14, {NS}')
    g('s_mov_b32 s50, 0xcccccccc')
    g('s_mov_b32 s51, 0xcccccccc')
    g('s_mov_b32 s52, 0xaaaaaaaa')
    g('s_mov_b32 s53, 0xaaaaaaaa')
    g('v_and_b32 v28, 15, v0')
    g('v_lshlrev_b32 v28, 5, v28')
    for k in range(NS):
        for pc in range(4):
            if k or pc:
                issue_piece(k, pc, PCAP, 16*k+4*pc)
    stamp(1)
    g('s_barrier')
    stamp(2)
    for u in range(2):
        g(f'ds_read_b128 {vr(32+8*u)}, v28 offset:{L_QP+512*u}')
        g(f'ds_read_b128 {vr(36+8*u)}, v28 offset:{L_QP+512*u+16}')
    g('s_waitcnt lgkmcnt(0)')
    for e in range(8):
        g(f'v_add_f32 v{32+e}, v{32+e}, v{40+e}')
    for t in range(4):
        g(f'v_cvt_pk_bf16_f32 v{2+t}, v{32+2*t}, v{33+2*t}')

    def blk_stamp():
        if diag:
            g('s_memrealtime s[76:77]')
            g('s_mov_b32 m0, s14')
            g('s_waitcnt lgkmcnt(0)')
            g('v_writelane_b32 v63, s76, m0')
    def kblock(k):
        blk_stamp()
        g('s_cmp_eq_u32 s14, 8')
        g('s_cselect_b32 s44, s48, s44')
        g('s_cselect_b32 s45, s49, s45')
        g('s_cmp_le_u32 s14, 8')
        g('s_cselect_b64 vcc, -1, 0')
        g('s_add_u32 s14, s14, 1')
        for pc in range(4):
            for t in range(4):
                for i in range(4):
                    r = slot(k, 4*pc+i) + t
                    if t == 0:
                        g(f'v_dot2_f32_bf16 v{18+i}, v{r}, v2, 0')
                    else:
                        g(f'v_dot2c_f32_bf16 v{18+i}, v{r}, v{2+t}')
            g('s_nop 2')
            g(f'v_add_f32_dpp v22, v18, v18 row_ror:8 {DM} bank_mask:0x3')
            g(f'v_add_f32_dpp v23, v20, v20 row_ror:8 {DM} bank_mask:0x3')
            g(f'v_add_f32_dpp v22, v19, v19 row_ror:8 {DM} bank_mask:0xc')
            g(f'v_add_f32_dpp v23, v21, v21 row_ror:8 {DM} bank_mask:0xc')
            g('s_nop 0')
            g(f'v_add_f32_dpp v{24+pc}, v22, v22 row_shl:4 {DM} bank_mask:0x5')
            g(f'v_add_f32_dpp v{24+pc}, v23, v23 row_shr:4 {DM} bank_mask:0xa')
            g(f's_cbranch_vccz L_kni{k}_{pc}')
            issue_piece(k, pc, SCAP)
            g.label(f'L_kni{k}_{pc}')
        for e in range(7):
            g(f'v_mov_b32 v{10+e}, v{11+e}')
        for pc in range(4):
            g(f'v_add_f32_dpp v{24+pc}, v{24+pc}, v{24+pc} quad_perm:[2,3,0,1] {DM} bank_mask:0xf')
        g('v_cndmask_b32 v24, v24, v25, s[50:51]')
        g('v_cndmask_b32 v26, v26, v27, s[50:51]')
        g('s_nop 0')
        g(f'v_add_f32_dpp v24, v24, v24 quad_perm:[1,0,3,2] {DM} bank_mask:0xf')
        g(f'v_add_f32_dpp v26, v26, v26 quad_perm:[1,0,3,2] {DM} bank_mask:0xf')
        g('v_cndmask_b32 v17, v24, v26, s[52:53]')
    def pi(pc, i): return 8*(i & 1) + 4*(i >> 1) + 2*(pc & 1) + (pc >> 1)
    def vblock(k):
        blk_stamp()
        g(f's_cmp_lt_u32 s14, {15+NS}')
        g('s_cselect_b64 vcc, -1, 0')
        g('s_add_u32 s14, s14, 1')
        for pc in range(4):
            for i in range(4):
                for t in range(4):
                    g(f'v_and_b32_dpp v{36+4*i+t}, v10, v{6+t} row_newbcast:{pi(pc,i)} {DM} bank_mask:0xf')
            g('s_waitcnt vmcnt(12)')
            if pc:
                g(f's_cbranch_vccnz L_vgo{pc}')
                g(f's_waitcnt vmcnt({12-4*pc})')
                g.label(f'L_vgo{pc}')
            else:
                g('s_nop 0')
            for i in range(4):
                r = slot(k, 4*pc+i)
                g(f'v_mfma_f32_16x16x32_bf16 v[32:35], {vr(36+4*i)}, {vr(r)}, v[32:35]')
            g(f's_cbranch_vccz L_vni{pc}')
            if VEND != VCAP:
                g(f's_cmp_gt_u32 s14, {8+NS+VSW}')
                issue_piece(k, pc, VCAP, cap2=VEND)
            else:
                issue_piece(k, pc, VCAP)
            g.label(f'L_vni{pc}')
        for e in range(7):
            g(f'v_mov_b32 v{10+e}, v{11+e}')

    g.label('L_kloop')
    for k in range(NS):
        kblock(k)
        if k == (7 % NS):
            g(f's_cmp_eq_u32 s14, {8+NS}')
            if k == NS-1:
                g('s_cbranch_scc0 L_kloop')
            else:
                g('s_cbranch_scc1 L_soft')
    if (7 % NS) != NS-1:
        g('s_branch L_kloop')
    g.label('L_soft')
    stamp(3)
    scale = 128 ** -0.5
    log2e = math.log2(math.e)
    if mimic:
        g(f's_mov_b32 s54, 0x{f2u(scale):08x}')
        g(f's_mov_b32 s55, 0x{f2u(log2e):08x}')
        for e in range(8):
            g(f'v_cvt_pk_bf16_f32 v{10+e}, 0, v{10+e}')
        for e in range(8):
            g(f'v_mul_f32 v{10+e}, s54, v{10+e}')
        for e in range(8):
            g(f'v_cvt_pk_bf16_f32 v{10+e}, 0, v{10+e}')
        for e in range(8):
            g(f'v_mul_f32 v{10+e}, s55, v{10+e}')
    else:
        g(f's_mov_b32 s55, 0x{f2u(scale*log2e):08x}')
        for e in range(8):
            g(f'v_mul_f32 v{10+e}, s55, v{10+e}')
    def rowswaps(op, r, t):
        for sw in ('v_permlane16_swap_b32', 'v_permlane32_swap_b32'):
            g(f'v_mov_b32 v{t}, v{r}')
            g('s_nop 1')
            g(f'{sw} v{r}, v{t}')
            g('s_nop 1')
            g(f'{op} v{r}, v{r}, v{t}')
    def allreduce(op, r, t):
        g('s_nop 1')
        for m in ('row_ror:8', 'row_ror:4', 'row_ror:2', 'row_ror:1'):
            g(f'{op}_dpp v{r}, v{r}, v{r} {m} {DM} bank_mask:0xf')
            g('s_nop 1')
        rowswaps(op, r, t)
    g('v_max3_f32 v18, v10, v11, v12')
    g('v_max3_f32 v19, v13, v14, v15')
    g('v_max3_f32 v18, v18, v16, v17')
    g('v_max_f32 v18, v18, v19')
    allreduce('v_max_f32', 18, 20)
    for e in range(8):
        g(f'v_sub_f32 v{10+e}, v{10+e}, v18')
    for e in range(8):
        g(f'v_exp_f32 v{10+e}, v{10+e}')
    g('s_nop 0')
    g('v_add_f32 v19, v10, v11')
    g('v_add_f32 v20, v12, v13')
    g('v_add_f32 v21, v14, v15')
    g('v_add_f32 v22, v16, v17')
    g('v_add_f32 v19, v19, v20')
    g('v_add_f32 v21, v21, v22')
    g('v_add_f32 v19, v19, v21')
    allreduce('v_add_f32', 19, 20)
    for e in range(8):
        g(f'v_cvt_pk_bf16_f32 v{10+e}, v{10+e}, v{10+e}')
    g('v_min_u32 v18, -2, v18')
    g('v_min_u32 v19, -2, v19')
    g('s_lshl_b32 s15, s10, 3')
    g('v_mov_b32 v20, s15')
    g(f'ds_write_b64 v20, v[18:19] offset:{L_MLW}')
    for r in range(4):
        g(f'v_mov_b32 v{32+r}, 0')
    g('v_and_b32 v29, 16, v0')
    g('v_add_u32 v28, v28, v29')
    g('s_lshl_b32 s15, s10, 9')
    g('v_add_u32 v28, s15, v28')
    g.label('L_vloop')
    vblock(8 % NS)
    g('s_cbranch_vccnz L_vloop')
    g(f'ds_write_b128 v28, v[32:35] offset:{L_OP}')
    g('s_waitcnt lgkmcnt(0)')
    stamp(4)
    g('s_barrier')
    if diag:
        g('s_lshl_b32 s76, s2, 3')
        g('s_add_u32 s76, s76, s3')
        g('s_lshl_b32 s76, s76, 8')
        g(f's_add_u32 s76, s76, {STAMP + (1<<18)}')
        g('v_lshlrev_b32 v8, 2, v0')
        g('buffer_store_dword v63, v8, s[72:75], s76 offen')
    stamp_flush()
    g('s_endpgm')

    g.label('L_helper')
    g('v_lshrrev_b32 v3, 4, v0')
    g('v_and_b32 v4, 15, v0')
    g('v_bfe_u32 v5, v0, 3, 1')
    g('s_lshr_b32 s13, s2, 3')
    g('s_add_u32 s14, s13, 32')
    g('s_cmp_eq_u32 s10, 0')
    g('s_cselect_b32 s64, s6, s14')
    g('s_cselect_b32 s65, s5, s4')
    g('s_movk_i32 s14, 3456')
    g('s_cselect_b32 s66, 0x2000, s14')
    g('s_cselect_b32 s67, s6, s13')
    g('s_lshl_b32 s67, s67, 8')
    g('s_cmp_lt_u32 s2, 112')
    g('s_cselect_b32 s68, 2, 1')
    g('s_cmp_lt_u32 s10, s68')
    g('s_cselect_b32 s68, 1, 0')
    g('v_and_b32 v1, 7, v0')
    g('v_lshl_add_u32 v1, v3, 3, v1')
    g('v_mul_u32_u24 v1, 40, v1')
    g('v_mul_u32_u24 v20, 1280, v5')
    g('v_add_u32 v1, v1, v20')
    g('s_lshl_b32 s11, s65, 2')
    g('v_add_u32 v2, s11, v3')
    g('v_mul_u32_u24 v2, 40, v2')
    g('v_add_u32 v2, v2, v20')
    g('s_mul_i32 s11, s66, 20')
    g('v_mul_u32_u24 v21, s11, v3')
    g('v_lshl_add_u32 v21, v4, 4, v21')
    g('s_cmp_eq_u32 s64, 45')
    g('s_cselect_b32 s11, 8, 16')
    g('v_cmp_gt_u32 vcc, s11, v4')
    g(f'v_mov_b32 v22, 0x{BIG:x}')
    g('s_mul_i32 s12, s65, 80')
    g('v_cndmask_b32 v21, v22, v21, vcc')
    g('s_mul_i32 s12, s12, s66')
    g('s_add_u32 s12, s12, s67')
    g('s_mul_i32 s50, s66, 640')
    g('s_mov_b32 s51, 0x20000')
    g('s_movk_i32 s46, 2560')
    g('s_mov_b32 s47, 0x20000')
    g('s_cmp_eq_u32 s10, 0')
    g('s_waitcnt lgkmcnt(0)')
    g(f's_load_dword s42, s[40:41], {EPOCH}')
    g('s_mov_b32 s44, s16')
    g('s_mov_b32 s45, s17')
    g('s_cselect_b32 s48, s22, s28')
    g('s_cselect_b32 s49, s23, s29')
    if diag:
        srd(72, 40, 41, STAMP + (1<<20))
        g('s_mov_b32 s80, s78')
    if 'h' in abl:
        stamp_flush()
        g('s_endpgm')
    g('s_cmp_eq_u32 s68, 0')
    g('s_cbranch_scc1 L_noload')
    XS, XC, WB = 30, 40, 96
    for base, vo in ((XS, 'v1'), (XC, 'v2')):
        g(f'buffer_load_dwordx4 {vr(base)}, {vo}, s[44:47], 0 offen')
        g(f'buffer_load_dwordx4 {vr(base+4)}, {vo}, s[44:47], 0 offen offset:16')
        g(f'buffer_load_dwordx2 {vr(base+8,2)}, {vo}, s[44:47], 0 offen offset:32')
    for i in range(20):
        g(f'buffer_load_dwordx4 {vr(WB+4*i)}, v21, s[48:51], s12 offen{wnt}')
        if i < 19: g('s_add_u32 s12, s12, s66')
    g.label('L_noload')
    srd(52, 40, 41, WS_USED)
    masks()
    g('v_lshrrev_b32 v3, 4, v0')
    g('v_lshrrev_b32 v23, 5, v0')
    g('v_lshlrev_b32 v23, 9, v23')
    g('v_lshl_add_u32 v23, v4, 5, v23')
    g('v_and_b32 v24, 16, v0')
    g('v_add_u32 v23, v23, v24')
    g('v_lshrrev_b32 v25, 5, v0')
    g('v_mul_u32_u24 v25, 40, v25')
    g('v_lshrrev_b32 v26, 1, v4')
    g('v_add_u32 v25, v25, v26')
    g('v_lshlrev_b32 v25, 11, v25')
    g('v_and_b32 v26, 1, v0')
    g('v_lshl_add_u32 v25, v26, 5, v25')
    g('v_add_u32 v25, v25, v24')
    g('v_cmp_gt_u32 vcc, 10, v4')
    g(f'v_mov_b32 v22, 0x{BIG:x}')
    g(f's_mul_i32 s69, s5, {5*2048}')
    g('v_cndmask_b32 v27, v22, v25, vcc')
    g('s_lshl_b32 s11, s6, 6')
    g('s_add_u32 s69, s69, s11')
    g(f's_add_u32 s69, s69, {YIN}')
    g('v_cmp_gt_u32 vcc, 32, v0')
    g('v_lshlrev_b32 v29, 4, v0')
    g('s_lshl_b32 s70, s6, 3')
    g('v_cndmask_b32 v28, v22, v29, vcc')
    g('s_add_u32 s70, s70, s5')
    g('s_lshl_b32 s70, s70, 9')
    g(f's_add_u32 s70, s70, {OIN}')
    g('v_mov_b32 v88, v22')
    g('s_lshl_b32 s71, s9, 7')
    g(f's_add_u32 s71, s71, {MLIN}')
    g('s_sub_u32 s11, s2, 112')
    g('s_mul_i32 s56, s11, 13108')
    g('s_lshr_b32 s56, s56, 16')
    g('s_mul_i32 s57, s56, 5')
    g('s_sub_u32 s57, s11, s57')
    g('s_lshl_b32 s58, s57, 14')
    g('s_lshl_b32 s11, s56, 6')
    g('s_add_u32 s58, s58, s11')
    g(f's_add_u32 s58, s58, {FIN}')
    g('s_waitcnt lgkmcnt(0)')
    g('s_add_u32 s42, s42, 1')
    g('s_and_b32 s43, s42, 0xff')
    g('v_mov_b32 v92, s43')
    g('s_movk_i32 s60, 0xff00')
    g('s_cmp_eq_u32 s68, 0')
    g('s_cbranch_scc0 L_unit')
    g('s_cmp_eq_u32 s10, 2')
    g('s_cbranch_scc0 L_bar1')
    g('v_mov_b32 v32, -1')
    g('v_lshlrev_b32 v39, 2, v0')
    g('v_and_b32 v39, 31, v39')
    g(f'ds_write_b32 v39, v32 offset:{L_MLW}')
    g('s_waitcnt lgkmcnt(0)')
    g('s_branch L_bar1')

    g.label('L_unit')
    g('s_waitcnt vmcnt(23)')
    stamp(1)
    U = 50
    for k in range(10):
        g(f'v_lshlrev_b32 v{U+2*k}, 16, v{XS+k}')
        g(f'v_and_b32 v{U+2*k+1}, 0xffff0000, v{XS+k}')
    g(f'v_pk_add_f32 v[70:71], v[{U}:{U+1}], v[{U+2}:{U+3}]')
    for k in range(2, 10):
        g(f'v_pk_add_f32 v[70:71], v[70:71], v[{U+2*k}:{U+2*k+1}]')
    g('v_add_f32 v70, v70, v71')
    def red_batch(r, t):
        for m in ('row_half_mirror', 'quad_perm:[2,3,0,1]', 'quad_perm:[1,0,3,2]'):
            g('s_nop 1')
            g(f'v_add_f32_dpp v{r}, v{r}, v{r} {m} {DM} bank_mask:0xf')
        rowswaps('v_add_f32', r, t)
    red_batch(70, 71)
    g(f's_mov_b32 s11, 0x{f2u(1.0/640):08x}')
    g('v_mul_f32 v70, s11, v70')
    for k in range(10):
        g(f'v_pk_add_f32 v[{U+2*k}:{U+2*k+1}], v[{U+2*k}:{U+2*k+1}], v[70:71] op_sel_hi:[1,0] neg_lo:[0,1] neg_hi:[0,1]')
    g(f'v_pk_mul_f32 v[72:73], v[{U}:{U+1}], v[{U}:{U+1}]')
    for k in range(1, 10):
        g(f'v_pk_fma_f32 v[72:73], v[{U+2*k}:{U+2*k+1}], v[{U+2*k}:{U+2*k+1}], v[72:73]')
    g('v_add_f32 v72, v72, v73')
    red_batch(72, 73)
    g('v_mul_f32 v72, s11, v72')
    g('v_cvt_pk_bf16_f32 v72, 0, v72')
    g(f'v_add_f32 v72, 0x{f2u(1e-5):08x}, v72')
    g('v_cvt_pk_bf16_f32 v72, 0, v72')
    g('v_sqrt_f32 v72, v72')
    g('v_cvt_pk_bf16_f32 v70, 0, v70')
    g('v_cvt_pk_bf16_f32 v72, 0, v72')
    g('v_rcp_f32 v74, v72')
    g('s_waitcnt vmcnt(20)')
    for k in range(10):
        g(f'v_lshlrev_b32 v{U+2*k}, 16, v{XC+k}')
        g(f'v_and_b32 v{U+2*k+1}, 0xffff0000, v{XC+k}')
    for k in range(10):
        g(f'v_pk_add_f32 v[{U+2*k}:{U+2*k+1}], v[{U+2*k}:{U+2*k+1}], v[70:71] op_sel_hi:[1,0] neg_lo:[0,1] neg_hi:[0,1]')
    for e in range(20):
        g(f'v_cvt_pk_bf16_f32 v{U+e}, 0, v{U+e}')
    for k in range(10):
        p = f'v[{U+2*k}:{U+2*k+1}]'
        g(f'v_pk_mul_f32 v[76:77], {p}, v[74:75] op_sel_hi:[1,0]')
        g(f'v_pk_fma_f32 {p}, v[76:77], v[72:73], {p} op_sel_hi:[1,0,1] neg_lo:[1,0,0] neg_hi:[1,0,0]')
        g(f'v_pk_fma_f32 {p}, {p}, v[74:75], v[76:77] op_sel_hi:[1,0,1]')
    for e in range(20):
        g(f'v_cvt_pk_bf16_f32 v{U+e}, v{U+e}, v{U+e}')
    stamp(2)
    for i in range(20):
        a = 36 + 4*(i & 1)
        for t in range(4):
            g(f'v_and_b32 v{a+t}, v{U+i}, v{6+t}')
        g(f's_waitcnt vmcnt({19-i})')
        g('s_nop 0')
        c_ = '0' if i == 0 else 'v[32:35]'
        g(f'v_mfma_f32_16x16x32_bf16 v[32:35], {vr(a)}, {vr(WB+4*i)}, {c_}')
    g('s_lshl_b32 s13, s64, 3')
    g('s_add_u32 s13, s13, s65')
    g('s_lshl_b32 s13, s13, 10')
    g('s_nop 4')
    tag(32)
    g('buffer_store_dwordx4 v[32:35], v23, s[52:55], s13 offen sc1')
    stamp(3)
    g('s_cmp_eq_u32 s10, 0')
    g('s_cbranch_scc0 L_bar1')
    g('v_lshrrev_b32 v36, 5, v0')
    g('v_lshlrev_b32 v36, 10, v36')
    g('v_and_b32 v37, 31, v0')
    g('v_lshl_add_u32 v36, v37, 4, v36')
    g('s_lshl_b32 s13, s6, 13')
    g('s_lshl_b32 s11, s7, 9')
    g('s_add_u32 s13, s13, s11')
    g('s_add_u32 s14, s13, 4096')
    g(f's_mov_b32 s12, {spin}')
    g.label('L_qg')
    for i in range(4):
        g(f'buffer_load_dwordx4 {vr(40+4*i)}, v36, s[52:55], {"s13" if i < 2 else "s14"} offen offset:{2048*(i&1)} sc1')
    g('s_waitcnt vmcnt(0)')
    untag(40, 16, 37)
    poll_tail('L_qg_ok', 'L_qg', 0)
    for r in range(4):
        g(f'v_add_f32 v{40+r}, v{40+r}, v{44+r}')
        g(f'v_add_f32 v{48+r}, v{48+r}, v{52+r}')
    for r in range(4):
        g(f'v_add_f32 v{40+r}, v{40+r}, v{48+r}')
    g(f'ds_write_b128 v29, v[40:43] offset:{L_QP}')
    g('s_waitcnt lgkmcnt(0)')
    g.label('L_bar1')
    stamp(4)
    g('s_barrier')
    if dbgt:
        g('s_memrealtime s[82:83]')
        g('s_waitcnt lgkmcnt(0)')
    stamp(5)
    WOB = 192
    g(f's_mul_i32 s11, s6, {128*1280}')
    g('s_add_u32 s48, s24, s11')
    g('s_addc_u32 s49, s25, 0')
    g(f's_mov_b32 s50, {128*1280}')
    g('s_mov_b32 s51, 0x20000')
    g(f'v_mul_u32_u24 v20, {8*1280}, v3')
    g('v_lshl_add_u32 v20, v4, 4, v20')
    g('v_cmp_gt_u32 vcc, 10, v4')
    g(f's_mul_i32 s11, s10, {32*1280}')
    g('s_mul_i32 s12, s5, 160')
    g('v_cndmask_b32 v20, v22, v20, vcc')
    g('s_add_u32 s11, s11, s12')
    for rg in range(8):
        if rg and rg % 3 == 0:
            g(f's_add_u32 s11, s11, {3*1280}')
        if rg >= WCAP: g(f's_waitcnt vmcnt({WCAP-1})')
        g(f'buffer_load_dwordx4 {vr(WOB+4*rg)}, v20, s[48:51], s11 offen offset:{1280*(rg%3)}{wnt}')
    g('s_cmp_eq_u32 s10, 2')
    g('s_cbranch_scc1 L_ml')
    g('s_sub_u32 s11, s2, 112')
    g('s_cmp_lt_u32 s11, 135')
    g('s_cselect_b32 s11, 1, 0')
    g('s_cmp_eq_u32 s10, 1')
    g('s_cselect_b32 s13, s11, 0')
    g('s_cmp_ge_u32 s2, 176')
    g('s_cselect_b32 s11, 1, 0')
    g('s_cmp_eq_u32 s10, 3')
    g('s_cselect_b32 s59, s11, 0')
    g('s_or_b32 s13, s13, s59')
    g('s_cmp_eq_u32 s13, 0')
    g('s_cbranch_scc1 L_bar2')
    g('s_cmp_eq_u32 s10, 3')
    g('s_cbranch_scc1 L_cons')
    srd(44, 32, 33, 1728*1280)
    srd(48, 30, 31, 3456)
    g(f'v_mul_u32_u24 v20, {16*1280}, v3')
    g('v_lshl_add_u32 v20, v4, 4, v20')
    g(f's_mul_i32 s11, s56, {64*1280}')
    g('s_lshl_b32 s12, s57, 8')
    g('s_add_u32 s11, s11, s12')
    for rg in range(16):
        if rg and rg % 3 == 0:
            g(f's_add_u32 s11, s11, {3*1280}')
        if rg >= 4: g('s_waitcnt vmcnt(3)')
        g(f'buffer_load_dwordx4 {vr(WB+4*rg)}, v20, s[44:47], s11 offen offset:{1280*(rg%3)}{wnt}')
    g('v_lshlrev_b32 v21, 5, v3')
    g('s_lshl_b32 s11, s56, 7')
    g('buffer_load_dwordx4 v[80:83], v21, s[48:51], s11 offen')
    g('buffer_load_dwordx4 v[84:87], v21, s[48:51], s11 offen offset:16')
    g('v_and_b32 v36, 7, v0')
    g('v_lshlrev_b32 v36, 10, v36')
    g('v_lshl_add_u32 v36, v5, 9, v36')
    g('v_lshl_add_u32 v36, v3, 6, v36')
    g('s_lshr_b32 s13, s56, 1')
    g('s_add_u32 s13, s13, 32')
    g('s_lshl_b32 s13, s13, 13')
    g('s_and_b32 s11, s56, 1')
    g('s_lshl_b32 s11, s11, 8')
    g('s_add_u32 s13, s13, s11')
    g(f's_mov_b32 s12, {spin}')
    g.label('L_hg')
    for i in range(4):
        g(f'buffer_load_dwordx4 {vr(48+4*i)}, v36, s[52:55], s13 offen offset:{16*i} sc1')
    g('s_waitcnt vmcnt(0)')
    untag(48, 16, 37)
    poll_tail('L_hg_ok', 'L_hg', 8)
    for m in ('row_half_mirror', 'quad_perm:[2,3,0,1]', 'quad_perm:[1,0,3,2]'):
        for e in range(16):
            g(f'v_add_f32_dpp v{48+e}, v{48+e}, v{48+e} {m} {DM} bank_mask:0xf')
    for k in range(8):
        g(f'v_lshlrev_b32 v{64+2*k}, 16, v{80+k}')
        g(f'v_and_b32 v{65+2*k}, 0xffff0000, v{80+k}')
    for e in range(16):
        g(f'v_cvt_pk_bf16_f32 v{48+e}, 0, v{48+e}')
        g(f'v_add_f32 v{48+e}, v{48+e}, v{64+e}')
        g(f'v_cvt_pk_bf16_f32 v{48+e}, 0, v{48+e}')
        g(f'v_cmp_lt_f32 vcc, 0, v{48+e}')
        g('s_nop 1')
        g(f'v_cndmask_b32 v{48+e}, 0, v{48+e}, vcc')
        g(f'v_mul_f32 v{48+e}, v{48+e}, v{48+e}')
        g(f'v_cvt_pk_bf16_f32 v{48+e}, v{48+e}, v{48+e}')
    for i in range(16):
        a = 36 + 4*(i & 1)
        for t in range(4):
            g(f'v_and_b32 v{a+t}, v{48+i}, v{6+t}')
        g('s_nop 1')
        c_ = '0' if i == 0 else 'v[32:35]'
        g(f'v_mfma_f32_16x16x32_bf16 v[32:35], {vr(a)}, {vr(WB+4*i)}, {c_}')
    g('s_nop 7')
    tag(32)
    g('buffer_store_dwordx4 v[32:35], v25, s[52:55], s58 offen sc1')
    g('s_branch L_bar2')

    g.label('L_ml')
    g('s_mov_b32 s59, 0')
    g('v_and_b32 v21, 3, v0')
    g('v_lshlrev_b32 v21, 3, v21')
    g(f's_mov_b32 s12, {spin}')
    g.label('L_mlw')
    g(f'ds_read_b64 v[30:31], v21 offset:{L_MLW}')
    g('s_waitcnt lgkmcnt(0)')
    g('v_max_u32 v36, v30, v31')
    g('v_cmp_eq_u32 vcc, -1, v36')
    poll_tail('L_mlw_ok', 'L_mlw', 8)
    def quadred(op, r):
        g('s_nop 1')
        g(f'{op}_dpp v{r}, v{r}, v{r} quad_perm:[2,3,0,1] {DM} bank_mask:0xf')
        g('s_nop 1')
        g(f'{op}_dpp v{r}, v{r}, v{r} quad_perm:[1,0,3,2] {DM} bank_mask:0xf')
    g('v_mov_b32 v32, v30')
    quadred('v_max_f32', 32)
    g('v_sub_f32 v33, v30, v32')
    g('v_exp_f32 v33, v33')
    g('s_nop 0')
    g('v_mul_f32 v33, v33, v31')
    quadred('v_add_f32', 33)
    g('v_mov_b32 v40, v32')
    g('v_mov_b32 v41, s42')
    g('v_mov_b32 v42, v33')
    g('v_mov_b32 v43, s42')
    g('s_lshl_b32 s11, s8, 4')
    g('v_mov_b32 v36, s11')
    g('v_lshlrev_b32 v38, 1, v21')
    g('s_mov_b64 exec, 1')
    g('buffer_store_dwordx4 v[40:43], v36, s[52:55], s71 offen sc1')
    g('s_mov_b64 exec, -1')
    g(f's_mov_b32 s12, {spin}')
    g.label('L_mlg')
    g('buffer_load_dwordx4 v[44:47], v38, s[52:55], s71 offen sc1')
    g('s_waitcnt vmcnt(0)')
    g('v_xor_b32 v45, s42, v45')
    g('v_xor_b32 v47, s42, v47')
    g('v_or_b32 v36, v45, v47')
    g('v_cmp_ne_u32 vcc, 0, v36')
    poll_tail('L_mlg_ok', 'L_mlg', 16)
    g('v_mov_b32 v34, v44')
    g('v_mov_b32 v35, v46')
    g('v_mov_b32 v32, v34')
    quadred('v_max_f32', 32)
    g('v_sub_f32 v33, v34, v32')
    g('v_exp_f32 v33, v33')
    g('s_nop 0')
    g('v_mul_f32 v33, v33, v35')
    quadred('v_add_f32', 33)
    g('v_sub_f32 v30, v30, v32')
    g('v_exp_f32 v30, v30')
    g('v_rcp_f32 v33, v33')
    g('s_nop 0')
    g('v_mul_f32 v30, v30, v33')
    g('v_lshrrev_b32 v21, 1, v21')
    g(f'ds_write_b32 v21, v30 offset:{L_FAC}')
    g('s_waitcnt lgkmcnt(0)')
    g('s_branch L_bar2')

    g.label('L_cons')
    srd(44, 16, 17, 2560)
    srd(48, 34, 35, 1280)
    g('s_sub_u32 s15, s2, 176')
    g('v_and_b32 v88, 3, v0')
    g('v_lshl_add_u32 v88, v88, 2, v3')
    g('s_lshl_b32 s11, s15, 4')
    g('v_add_u32 v88, s11, v88')
    g('v_lshlrev_b32 v88, 1, v88')
    g('buffer_load_ushort v90, v88, s[44:47], 0 offen')
    g('s_cmp_ge_u32 s15, 40')
    g('s_cselect_b32 s11, 1280, 0')
    g('v_subrev_u32 v36, s11, v88')
    g('buffer_load_ushort v91, v36, s[48:51], 0 offen')
    g('v_cmp_gt_u32 vcc, 44, v0')
    g('s_lshl_b32 s13, s15, 11')
    g(f's_add_u32 s13, s13, {FIN}')
    g('v_cndmask_b32 v36, v22, v29, vcc')
    g('v_cndmask_b32 v38, v92, 0, vcc')
    g(f's_mov_b32 s12, {spin}')
    g.label('L_fg')
    g('buffer_load_dwordx4 v[40:43], v29, s[52:55], s13 offen sc1')
    g('buffer_load_dwordx4 v[44:47], v36, s[52:55], s13 offen offset:1024 sc1')
    g('s_waitcnt vmcnt(0)')
    for r in range(4):
        g(f'v_or_b32 v{44+r}, v{44+r}, v38')
    def chk8(a, t):
        untag(a, 8, t)
    chk8(40, 37)
    poll_tail('L_fg_ok', 'L_fg', 16)
    def red16(a):
        for r in range(4):
            g(f'v_add_f32 v{a+r}, v{a+r}, v{a+4+r}')
        for m in ('row_ror:4', 'row_ror:8'):
            for r in range(4):
                g(f'v_add_f32_dpp v{a+r}, v{a+r}, v{a+r} {m} {DM} bank_mask:0xf')
        g('s_nop 0')
        g(f'v_permlane16_swap_b32 v{a}, v{a+1}')
        g(f'v_permlane16_swap_b32 v{a+2}, v{a+3}')
        g('s_nop 0')
        g(f'v_add_f32 v{a}, v{a}, v{a+1}')
        g(f'v_add_f32 v{a+2}, v{a+2}, v{a+3}')
        g('s_nop 1')
        g(f'v_permlane32_swap_b32 v{a}, v{a+2}')
        g('s_nop 1')
        g(f'v_add_f32 v{a}, v{a}, v{a+2}')
    red16(40)
    g('v_cvt_pk_bf16_f32 v32, 0, v40')
    g('v_lshlrev_b32 v91, 16, v91')
    g('v_lshlrev_b32 v90, 16, v90')
    g('v_add_f32 v32, v32, v91')
    g('v_cvt_pk_bf16_f32 v32, 0, v32')
    g(f'v_mul_f32 v33, 0x{f2u(-log2e):08x}, v32')
    g('v_exp_f32 v33, v33')
    g('s_nop 0')
    g('v_add_f32 v33, 1.0, v33')
    g('v_rcp_f32 v33, v33')
    g('s_nop 0')
    g('v_mul_f32 v32, v32, v33')
    g('v_cvt_pk_bf16_f32 v91, 0, v32')

    g.label('L_bar2')
    srd(44, 36, 37, 2560)
    g('v_and_b32 v20, 3, v0')
    g('v_lshl_add_u32 v20, v5, 2, v20')
    g('v_lshlrev_b32 v20, 9, v20')
    g('v_lshl_add_u32 v20, v3, 5, v20')
    g('s_lshl_b32 s11, s10, 7')
    g('v_add_u32 v20, s11, v20')
    g('s_lshl_b32 s13, s6, 12')
    g(f's_add_u32 s13, s13, {OIN}')
    g('v_mov_b32 v21, 0')
    g('v_and_b32 v30, 0x1f0, v29')
    g('s_lshl_b32 s11, s10, 10')
    g('v_add_u32 v31, s11, v29')
    g('s_sub_u32 s15, s2, 176')
    g('s_lshl_b32 s15, s15, 11')
    g(f's_add_u32 s15, s15, {YIN}')
    g(f's_mov_b32 s12, {spin}')
    g('s_waitcnt vmcnt(0)')
    stamp(7)
    g('s_barrier')
    if dbgt:
        g('s_memrealtime s[80:81]')
        g('s_waitcnt lgkmcnt(0)')
    stamp(8)
    g('s_cmp_eq_u32 s10, 0')
    g('s_cbranch_scc0 L_og')
    g(f'ds_read_b128 v[64:67], v21 offset:{L_FAC}')
    for u in range(4):
        g(f'ds_read_b128 {vr(48+4*u)}, v30 offset:{L_OP+512*u}')
    g('s_waitcnt lgkmcnt(3)')
    for e in range(4):
        g(f'v_mul_f32 v{48+e}, v64, v{48+e}')
    for u in range(1, 4):
        g(f's_waitcnt lgkmcnt({3-u})')
        for e in range(4):
            g(f'v_fmac_f32 v{48+e}, v{64+u}, v{48+4*u+e}')
    tag(48)
    g('buffer_store_dwordx4 v[48:51], v28, s[52:55], s70 offen sc1')
    g.label('L_og')
    g('buffer_load_dwordx4 v[40:43], v20, s[52:55], s13 offen sc1')
    g('buffer_load_dwordx4 v[44:47], v20, s[52:55], s13 offen offset:16 sc1')
    g('s_waitcnt vmcnt(0)')
    chk8(40, 37)
    poll_tail('L_og_ok', 'L_og', 0)
    stamp(9)
    for m in ('quad_perm:[2,3,0,1]', 'quad_perm:[1,0,3,2]'):
        for e in range(8):
            g(f'v_add_f32_dpp v{40+e}, v{40+e}, v{40+e} {m} {DM} bank_mask:0xf')
    for e in range(8):
        g(f'v_cvt_pk_bf16_f32 v{40+e}, v{40+e}, v{40+e}')
    def buildA(a, rg):
        for t in range(4):
            g(f'v_and_b32 v{a+t}, v{40+rg}, v{6+t}')
    buildA(52, 0)
    for rg in range(8):
        a = 52 + 4*(rg & 1)
        if rg < 7:
            buildA(52 + 4*((rg+1) & 1), rg+1)
        else:
            g('s_nop 0')
        c_ = '0' if rg == 0 else 'v[32:35]'
        g(f'v_mfma_f32_16x16x32_bf16 v[32:35], {vr(a)}, {vr(WOB+4*rg)}, {c_}')
    g('s_nop 7')
    g(f'ds_write_b128 v31, v[32:35] offset:{L_YP}')
    g('s_waitcnt lgkmcnt(0)')
    g('s_barrier')
    g('s_cmp_eq_u32 s10, 3')
    g('s_cbranch_scc0 L_hend')
    for u in range(4):
        g(f'ds_read_b128 {vr(48+4*u)}, v29 offset:{L_YP+1024*u}')
    g('s_waitcnt lgkmcnt(2)')
    for r in range(4):
        g(f'v_add_f32 v{48+r}, v{48+r}, v{52+r}')
    g('s_waitcnt lgkmcnt(0)')
    for r in range(4):
        g(f'v_add_f32 v{56+r}, v{56+r}, v{60+r}')
    for r in range(4):
        g(f'v_add_f32 v{48+r}, v{48+r}, v{56+r}')
    tag(48)
    g('buffer_store_dwordx4 v[48:51], v27, s[52:55], s69 offen sc1')
    stamp(10)
    g('s_cmp_eq_u32 s59, 0')
    g('s_cbranch_scc1 L_hend')
    g(f's_mov_b32 s12, {spin}')
    g.label('L_yg')
    g('buffer_load_dwordx4 v[40:43], v29, s[52:55], s15 offen sc1')
    g('buffer_load_dwordx4 v[44:47], v29, s[52:55], s15 offen offset:1024 sc1')
    g('s_waitcnt vmcnt(0)')
    chk8(40, 37)
    poll_tail('L_yg_ok', 'L_yg', 0)
    red16(40)
    g('v_cvt_pk_bf16_f32 v32, 0, v40')
    g('v_mul_f32 v32, v32, v91')
    g('v_cvt_pk_bf16_f32 v32, 0, v32')
    g('v_add_f32 v32, v32, v90')
    g('v_cvt_pk_bf16_f32 v32, v32, v32')
    g('buffer_store_short v32, v88, s[44:47], 0 offen')
    g('s_cmp_eq_u32 s2, 176')
    g('s_cbranch_scc0 L_nobump')
    g('v_mov_b32 v33, s42')
    g(f's_mov_b32 s11, {EPOCH}')
    g('s_mov_b64 exec, 1')
    g('buffer_store_dword v33, v21, s[52:55], s11 offen sc1')
    g.label('L_nobump')
    stamp(11)
    g.label('L_hend')
    if dbgt:
        g('s_cmp_eq_u32 s10, 3')
        g('s_cbranch_scc0 L_exit')
        g('s_memrealtime s[76:77]')
        srd(72, 38, 39, 256)
        g('s_waitcnt lgkmcnt(0)')
        g('s_mov_b64 exec, 1')
        g('v_mov_b32 v8, 0')
        g('v_mov_b32 v4, s76')
        g('s_not_b32 s79, s78')
        g('v_mov_b32 v5, s79')
        g('v_mov_b32 v6, s78')
        g('v_mov_b32 v7, s80')
        g('s_not_b32 s79, s80')
        g('v_mov_b32 v9, s79')
        g('v_mov_b32 v10, s82')
        g('s_not_b32 s79, s82')
        g('v_mov_b32 v11, s79')
        g('buffer_atomic_umax v4, v8, s[72:75], 0 offen')
        g('buffer_atomic_umax v5, v8, s[72:75], 0 offen offset:4')
        g('buffer_atomic_umax v6, v8, s[72:75], 0 offen offset:8')
        g('buffer_atomic_umax v7, v8, s[72:75], 0 offen offset:12')
        g('buffer_atomic_umax v9, v8, s[72:75], 0 offen offset:16')
        g('buffer_atomic_umax v10, v8, s[72:75], 0 offen offset:20')
        g('buffer_atomic_umax v11, v8, s[72:75], 0 offen offset:24')
    stamp_flush()
    g.label('L_exit')
    g('s_endpgm')

    out = HEADER
    out += f"; @launch grid=(256,1,1) block=(512,1,1) lds={LDS_SZ}\n"
    out += '.amdgcn_target "amdgcn-amd-amdhsa--gfx950"\n.text\n'
    out += f'.globl {NAME}_kernel\n.p2align 8\n.type {NAME}_kernel,@function\n{NAME}_kernel:\n'
    out += '\n'.join(g.L) + '\n'
    out += f""".section .rodata,"a"
.p2align 6
.amdhsa_kernel {NAME}_kernel
  .amdhsa_next_free_vgpr 256
  .amdhsa_next_free_sgpr 96
  .amdhsa_accum_offset 256
  .amdhsa_group_segment_fixed_size 0
  .amdhsa_kernarg_size 104
  .amdhsa_user_sgpr_count 2
  .amdhsa_user_sgpr_kernarg_segment_ptr 1
  .amdhsa_system_sgpr_workgroup_id_x 1
  .amdhsa_float_denorm_mode_32 3
.end_amdhsa_kernel
"""
    return out

if __name__ == '__main__':
    kw = eval('dict(' + (sys.argv[2] if len(sys.argv) > 2 else '') + ')')
    open(sys.argv[1], 'w').write(gen(**kw))
```

```python
import sys, math, struct
from gen import NAME, HEADER, f2u, G, vr

UIN = 0
UIN_SZ = 46*8*1024
OIN = UIN + UIN_SZ
OIN_SZ = 256*512
YIN = OIN + OIN_SZ
YIN_SZ = 80*2048
FIN = YIN + YIN_SZ
FIN_SZ = 80*2048
MLIN = FIN + FIN_SZ
MLIN_SZ = 64*128
EPOCH = MLIN + MLIN_SZ
WS_USED = EPOCH + 128
STAMP = 4 << 20
BIG = 0x7ffff000

L_QP = 0
L_MLW = 1024
L_FAC = L_MLW + 32
L_OP = L_FAC + 32
L_YP = L_OP + 2048
LDS_SZ = L_YP + 4096

def gen(NS=3, PB=8, VB=6, PCAP=6, WCAP=8, SCAP=6, VCAP=6, VEND=16, VSW=6, rot=1, diag=False, wnt=' nt', mimic=True, hfirst=True, kvmod=' nt',
        spin=1<<17, abl='', UCAP=20, dbgt=False, qspread=True):
    R = NS * 16
    if 'x' in abl or 'p' in abl: spin = 0
    g = G()
    DM = 'row_mask:0xf'
    def stamp(idx):
        if diag:
            g(f's_memrealtime s[76:77]')
            g('s_waitcnt lgkmcnt(0)')
            g(f's_mov_b32 s{80+idx}, s76')
    def stamp_flush():
        if diag:
            g('s_lshl_b32 s76, s2, 3')
            g('s_add_u32 s76, s76, s3')
            g('s_lshl_b32 s76, s76, 6')
            g(f's_add_u32 s76, s76, {STAMP}')
            g('s_mov_b64 exec, 1')
            for q in range(4):
                for r in range(4):
                    g(f'v_mov_b32 v{4+r}, s{80+4*q+r}')
                g('v_mov_b32 v8, 0')
                g(f'buffer_store_dwordx4 v[4:7], v8, s[72:75], s76 offen offset:{16*q}')
                g('s_nop 1')
            g('s_waitcnt vmcnt(0)')
    def srd(d, lo, hi, size):
        g(f's_mov_b32 s{d}, s{lo}')
        g(f's_mov_b32 s{d+1}, s{hi}')
        g(f's_mov_b32 s{d+2}, {size}')
        g(f's_mov_b32 s{d+3}, 0x20000')
    def masks():
        g('v_and_b32 v2, 1, v0')
        g('v_lshlrev_b32 v2, 4, v2')
        g('v_mov_b32 v3, 0xffff')
        g('v_lshlrev_b32 v3, v2, v3')
        g('v_bfe_u32 v2, v0, 1, 2')
        for t in range(4):
            g(f'v_cmp_eq_u32 vcc, {t}, v2')
            g('s_nop 1')
            g(f'v_cndmask_b32 v{6+t}, 0, v3, vcc')
    lab = [0]
    def poll_tail(okl, againl, sleep):
        g('s_sub_u32 s12, s12, 1')
        g(f's_cbranch_scc1 {okl}')
        if sleep:
            g(f's_cbranch_vccz {okl}')
            g(f's_sleep {sleep}')
            g(f's_branch {againl}')
        else:
            g(f's_cbranch_vccnz {againl}')
        g.label(okl)

    def tag(a, n=4):
        for r in range(n):
            g(f'v_and_or_b32 v{a+r}, v{a+r}, s60, v92')
    def untag(a, n, t):
        for r in range(n):
            g(f'v_xor_b32 v{a+r}, s43, v{a+r}')
        g(f'v_or3_b32 v{t}, v{a}, v{a+1}, v{a+2}')
        for e in range(3, n-1, 2):
            g(f'v_or3_b32 v{t}, v{t}, v{a+e}, v{a+e+1}')
        g(f'v_or_b32 v{t}, v{t}, v{a+n-1}')
        g(f'v_and_b32 v{t}, 0xff, v{t}')
        g(f'v_cmp_ne_u32 vcc, 0, v{t}')
    g('s_cmp_ge_u32 s2, 256')
    g('s_cbranch_scc1 L_exit')
    if diag or dbgt:
        g('s_memrealtime s[78:79]')
    g('s_load_dwordx16 s[16:31], s[0:1], 0')
    g('s_load_dwordx8 s[32:39], s[0:1], 64')
    g('s_load_dwordx2 s[40:41], s[0:1], 96')
    g('v_lshrrev_b32 v1, 6, v0')
    g('v_and_b32 v0, 63, v0')
    g('v_readfirstlane_b32 s3, v1')
    g('s_and_b32 s4, s2, 7')
    g('s_lshr_b32 s5, s2, 3')
    g('s_lshr_b32 s6, s5, 3')
    g('s_lshl_b32 s7, s4, 2')
    g('s_add_u32 s6, s6, s7')
    g('s_bfe_u32 s7, s5, 0x10002')
    g('s_and_b32 s8, s5, 3')
    g('s_and_b32 s5, s5, 7')
    g('s_lshl_b32 s9, s7, 5')
    g('s_add_u32 s9, s9, s6')
    g('s_and_b32 s10, s3, 3')
    if diag:
        for i in range(16):
            g(f's_mov_b32 s{80+i}, 0')
    g('s_cmp_ge_u32 s3, 4')
    g('s_cbranch_scc%d L_helper' % (0 if hfirst else 1))

    RB = 64
    def slot(k, s): return RB + 4*(16*k + s)
    g('v_lshlrev_b32 v1, 4, v0')
    g('s_lshl_b32 s13, s8, 2')
    g('s_add_u32 s13, s13, s10')
    g('s_lshl_b32 s13, s13, 12')
    if rot:
        g(f's_mul_i32 s14, s9, {rot*65536}')
        g('s_add_u32 s13, s13, s14')
        g('s_and_b32 s13, s13, 0x1fffff')
    g('s_lshl_b32 s11, s9, 21')
    g('s_mov_b32 s46, 0x200000')
    g('s_mov_b32 s47, 0x20000')
    g('s_waitcnt lgkmcnt(0)')
    g('s_add_u32 s44, s18, s11')
    g('s_addc_u32 s45, s19, 0')
    def issue_piece(k, pc, cap, first=10**9, cap2=None):
        for i in range(4):
            r = slot(k, 4*pc+i)
            if first + i >= cap:
                if cap2 is not None:
                    lab[0] += 1
                    g(f's_cbranch_scc1 L_c{lab[0]}')
                    g(f's_waitcnt vmcnt({cap-1})')
                    g.label(f'L_c{lab[0]}')
                    if cap2 < 16: g(f's_waitcnt vmcnt({cap2-1})')
                else:
                    g(f's_waitcnt vmcnt({cap-1})')
            g(f'buffer_load_dwordx4 {vr(r)}, v1, s[44:47], s13 offen offset:{1024*i}{kvmod}')
        g('s_add_u32 s13, s13, 0x10000')
        g('s_and_b32 s13, s13, 0x1fffff')
    issue_piece(0, 0, PCAP, 0)
    g('s_add_u32 s48, s20, s11')
    g('s_addc_u32 s49, s21, 0')
    if diag:
        srd(72, 40, 41, STAMP + (1<<20))
        g('s_mov_b32 s80, s78')
    masks()
    g(f's_mov_b32 s14, {NS}')
    g('s_mov_b32 s50, 0xcccccccc')
    g('s_mov_b32 s51, 0xcccccccc')
    g('s_mov_b32 s52, 0xaaaaaaaa')
    g('s_mov_b32 s53, 0xaaaaaaaa')
    g('v_and_b32 v28, 15, v0')
    g('v_lshlrev_b32 v28, 5, v28')
    for k in range(NS):
        for pc in range(4):
            if k or pc:
                issue_piece(k, pc, PCAP, 16*k+4*pc)
                if diag:
                    g('s_memrealtime s[76:77]')
                    g('s_waitcnt lgkmcnt(0)')
                    g(f'v_writelane_b32 v63, s76, {32+4*k+pc}')
                if 4*k+pc == PB:
                    g('s_barrier')
    stamp(1)
    g('s_barrier')
    stamp(2)
    for u in range(2):
        g(f'ds_read_b128 {vr(32+8*u)}, v28 offset:{L_QP+512*u}')
        g(f'ds_read_b128 {vr(36+8*u)}, v28 offset:{L_QP+512*u+16}')
    g('s_waitcnt lgkmcnt(0)')
    for e in range(8):
        g(f'v_add_f32 v{32+e}, v{32+e}, v{40+e}')
    for t in range(4):
        g(f'v_cvt_pk_bf16_f32 v{2+t}, v{32+2*t}, v{33+2*t}')

    def blk_stamp():
        if diag:
            g('s_memrealtime s[76:77]')
            g('s_mov_b32 m0, s14')
            g('s_waitcnt lgkmcnt(0)')
            g('v_writelane_b32 v63, s76, m0')
    def kblock(k):
        blk_stamp()
        g('s_cmp_eq_u32 s14, 8')
        g('s_cselect_b32 s44, s48, s44')
        g('s_cselect_b32 s45, s49, s45')
        g('s_cmp_le_u32 s14, 8')
        g('s_cselect_b64 vcc, -1, 0')
        g('s_add_u32 s14, s14, 1')
        for pc in range(4):
            for t in range(4):
                for i in range(4):
                    r = slot(k, 4*pc+i) + t
                    if t == 0:
                        g(f'v_dot2_f32_bf16 v{18+i}, v{r}, v2, 0')
                    else:
                        g(f'v_dot2c_f32_bf16 v{18+i}, v{r}, v{2+t}')
            g('s_nop 2')
            g(f'v_add_f32_dpp v22, v18, v18 row_ror:8 {DM} bank_mask:0x3')
            g(f'v_add_f32_dpp v23, v20, v20 row_ror:8 {DM} bank_mask:0x3')
            g(f'v_add_f32_dpp v22, v19, v19 row_ror:8 {DM} bank_mask:0xc')
            g(f'v_add_f32_dpp v23, v21, v21 row_ror:8 {DM} bank_mask:0xc')
            g('s_nop 0')
            g(f'v_add_f32_dpp v{24+pc}, v22, v22 row_shl:4 {DM} bank_mask:0x5')
            g(f'v_add_f32_dpp v{24+pc}, v23, v23 row_shr:4 {DM} bank_mask:0xa')
            g(f's_cbranch_vccz L_kni{k}_{pc}')
            issue_piece(k, pc, SCAP)
            g.label(f'L_kni{k}_{pc}')
        for e in range(7):
            g(f'v_mov_b32 v{10+e}, v{11+e}')
        for pc in range(4):
            g(f'v_add_f32_dpp v{24+pc}, v{24+pc}, v{24+pc} quad_perm:[2,3,0,1] {DM} bank_mask:0xf')
        g('v_cndmask_b32 v24, v24, v25, s[50:51]')
        g('v_cndmask_b32 v26, v26, v27, s[50:51]')
        g('s_nop 0')
        g(f'v_add_f32_dpp v24, v24, v24 quad_perm:[1,0,3,2] {DM} bank_mask:0xf')
        g(f'v_add_f32_dpp v26, v26, v26 quad_perm:[1,0,3,2] {DM} bank_mask:0xf')
        g('v_cndmask_b32 v17, v24, v26, s[52:53]')
    def pi(pc, i): return 8*(i & 1) + 4*(i >> 1) + 2*(pc & 1) + (pc >> 1)
    def vblock(k):
        blk_stamp()
        g(f's_cmp_lt_u32 s14, {15+NS}')
        g('s_cselect_b64 vcc, -1, 0')
        g('s_add_u32 s14, s14, 1')
        for pc in range(4):
            for i in range(4):
                for t in range(4):
                    g(f'v_and_b32_dpp v{36+4*i+t}, v10, v{6+t} row_newbcast:{pi(pc,i)} {DM} bank_mask:0xf')
            g('s_waitcnt vmcnt(12)')
            if pc:
                g(f's_cbranch_vccnz L_vgo{pc}')
                g(f's_waitcnt vmcnt({12-4*pc})')
                g.label(f'L_vgo{pc}')
            else:
                g('s_nop 0')
            for i in range(4):
                r = slot(k, 4*pc+i)
                g(f'v_mfma_f32_16x16x32_bf16 v[32:35], {vr(36+4*i)}, {vr(r)}, v[32:35]')
            g(f's_cbranch_vccz L_vni{pc}')
            if VEND != VCAP:
                g(f's_cmp_gt_u32 s14, {8+NS+VSW}')
                issue_piece(k, pc, VCAP, cap2=VEND)
            else:
                issue_piece(k, pc, VCAP)
            g.label(f'L_vni{pc}')
        for e in range(7):
            g(f'v_mov_b32 v{10+e}, v{11+e}')

    g.label('L_kloop')
    for k in range(NS):
        kblock(k)
        if k == (7 % NS):
            g(f's_cmp_eq_u32 s14, {8+NS}')
            if k == NS-1:
                g('s_cbranch_scc0 L_kloop')
            else:
                g('s_cbranch_scc1 L_soft')
    if (7 % NS) != NS-1:
        g('s_branch L_kloop')
    g.label('L_soft')
    stamp(3)
    scale = 128 ** -0.5
    log2e = math.log2(math.e)
    if mimic:
        g(f's_mov_b32 s54, 0x{f2u(scale):08x}')
        g(f's_mov_b32 s55, 0x{f2u(log2e):08x}')
        for e in range(8):
            g(f'v_cvt_pk_bf16_f32 v{10+e}, 0, v{10+e}')
        for e in range(8):
            g(f'v_mul_f32 v{10+e}, s54, v{10+e}')
        for e in range(8):
            g(f'v_cvt_pk_bf16_f32 v{10+e}, 0, v{10+e}')
        for e in range(8):
            g(f'v_mul_f32 v{10+e}, s55, v{10+e}')
    else:
        g(f's_mov_b32 s55, 0x{f2u(scale*log2e):08x}')
        for e in range(8):
            g(f'v_mul_f32 v{10+e}, s55, v{10+e}')
    def rowswaps(op, r, t):
        for sw in ('v_permlane16_swap_b32', 'v_permlane32_swap_b32'):
            g(f'v_mov_b32 v{t}, v{r}')
            g('s_nop 1')
            g(f'{sw} v{r}, v{t}')
            g('s_nop 1')
            g(f'{op} v{r}, v{r}, v{t}')
    def allreduce(op, r, t):
        g('s_nop 1')
        for m in ('row_ror:8', 'row_ror:4', 'row_ror:2', 'row_ror:1'):
            g(f'{op}_dpp v{r}, v{r}, v{r} {m} {DM} bank_mask:0xf')
            g('s_nop 1')
        rowswaps(op, r, t)
    g('v_max3_f32 v18, v10, v11, v12')
    g('v_max3_f32 v19, v13, v14, v15')
    g('v_max3_f32 v18, v18, v16, v17')
    g('v_max_f32 v18, v18, v19')
    allreduce('v_max_f32', 18, 20)
    for e in range(8):
        g(f'v_sub_f32 v{10+e}, v{10+e}, v18')
    for e in range(8):
        g(f'v_exp_f32 v{10+e}, v{10+e}')
    g('s_nop 0')
    g('v_add_f32 v19, v10, v11')
    g('v_add_f32 v20, v12, v13')
    g('v_add_f32 v21, v14, v15')
    g('v_add_f32 v22, v16, v17')
    g('v_add_f32 v19, v19, v20')
    g('v_add_f32 v21, v21, v22')
    g('v_add_f32 v19, v19, v21')
    allreduce('v_add_f32', 19, 20)
    for e in range(8):
        g(f'v_cvt_pk_bf16_f32 v{10+e}, v{10+e}, v{10+e}')
    g('s_lshl_b32 s15, s10, 3')
    g('v_mov_b32 v20, s15')
    g(f'ds_write_b64 v20, v[18:19] offset:{L_MLW}')
    for r in range(4):
        g(f'v_mov_b32 v{32+r}, 0')
    g('v_and_b32 v29, 16, v0')
    g('v_add_u32 v28, v28, v29')
    g('s_lshl_b32 s15, s10, 9')
    g('v_add_u32 v28, s15, v28')
    g('s_waitcnt lgkmcnt(0)')
    g('s_barrier')
    g.label('L_vloop')
    g(f's_cmp_eq_u32 s14, {8+NS+VB}')
    g('s_cbranch_scc0 L_vnb')
    g('s_barrier')
    g.label('L_vnb')
    vblock(8 % NS)
    g('s_cbranch_vccnz L_vloop')
    g(f'ds_write_b128 v28, v[32:35] offset:{L_OP}')
    g('s_waitcnt lgkmcnt(0)')
    stamp(4)
    g('s_barrier')
    if diag:
        g('s_lshl_b32 s76, s2, 3')
        g('s_add_u32 s76, s76, s3')
        g('s_lshl_b32 s76, s76, 8')
        g(f's_add_u32 s76, s76, {STAMP + (1<<18)}')
        g('v_lshlrev_b32 v8, 2, v0')
        g('buffer_store_dword v63, v8, s[72:75], s76 offen')
    stamp_flush()
    g('s_endpgm')

    g.label('L_helper')
    g('v_lshrrev_b32 v3, 4, v0')
    g('v_and_b32 v4, 15, v0')
    g('v_bfe_u32 v5, v0, 3, 1')
    g('s_lshr_b32 s13, s2, 3')
    g('s_add_u32 s14, s13, 32')
    g('s_cmp_eq_u32 s10, 0')
    g('s_cselect_b32 s64, %s, s14' % ('s13' if qspread else 's6'))
    g('s_cselect_b32 s65, %s, s4' % ('s4' if qspread else 's5'))
    g('s_movk_i32 s14, 3456')
    g('s_cselect_b32 s66, 0x2000, s14')
    g('s_cselect_b32 s67, %s, s13' % ('s13' if qspread else 's6'))
    g('s_lshl_b32 s67, s67, 8')
    g('s_cmp_lt_u32 s2, 112')
    g('s_cselect_b32 s68, 2, 1')
    g('s_cmp_lt_u32 s10, s68')
    g('s_cselect_b32 s68, 1, 0')
    g('v_and_b32 v1, 7, v0')
    g('v_lshl_add_u32 v1, v3, 3, v1')
    g('v_mul_u32_u24 v1, 40, v1')
    g('v_mul_u32_u24 v20, 1280, v5')
    g('v_add_u32 v1, v1, v20')
    g('s_lshl_b32 s11, s65, 2')
    g('v_add_u32 v2, s11, v3')
    g('v_mul_u32_u24 v2, 40, v2')
    g('v_add_u32 v2, v2, v20')
    g('s_mul_i32 s11, s66, 20')
    g('v_mul_u32_u24 v21, s11, v3')
    g('v_lshl_add_u32 v21, v4, 4, v21')
    g('s_cmp_eq_u32 s64, 45')
    g('s_cselect_b32 s11, 8, 16')
    g('v_cmp_gt_u32 vcc, s11, v4')
    g(f'v_mov_b32 v22, 0x{BIG:x}')
    g('s_mul_i32 s12, s65, 80')
    g('v_cndmask_b32 v21, v22, v21, vcc')
    g('s_mul_i32 s12, s12, s66')
    g('s_add_u32 s12, s12, s67')
    g('s_mul_i32 s50, s66, 640')
    g('s_mov_b32 s51, 0x20000')
    g('s_movk_i32 s46, 2560')
    g('s_mov_b32 s47, 0x20000')
    g('s_cmp_eq_u32 s10, 0')
    g('s_waitcnt lgkmcnt(0)')
    g(f's_load_dword s42, s[40:41], {EPOCH}')
    g('s_mov_b32 s44, s16')
    g('s_mov_b32 s45, s17')
    g('s_cselect_b32 s48, s22, s28')
    g('s_cselect_b32 s49, s23, s29')
    if diag:
        srd(72, 40, 41, STAMP + (1<<20))
        g('s_mov_b32 s80, s78')
    if 'h' in abl:
        stamp_flush()
        g('s_endpgm')
    if 'w' in abl: g('s_mov_b32 s50, 0')
    g('s_cmp_eq_u32 s68, 0')
    g('s_cbranch_scc1 L_noload')
    XS, XC, WB = 30, 40, 96
    for base, vo in ((XS, 'v1'), (XC, 'v2')):
        g(f'buffer_load_dwordx4 {vr(base)}, {vo}, s[44:47], 0 offen')
        g(f'buffer_load_dwordx4 {vr(base+4)}, {vo}, s[44:47], 0 offen offset:16')
        g(f'buffer_load_dwordx2 {vr(base+8,2)}, {vo}, s[44:47], 0 offen offset:32')
    for i in range(20):
        g(f'buffer_load_dwordx4 {vr(WB+4*i)}, v21, s[48:51], s12 offen{wnt}')
        if i < 19: g('s_add_u32 s12, s12, s66')
    g.label('L_noload')
    srd(52, 40, 41, WS_USED)
    masks()
    g('v_lshrrev_b32 v3, 4, v0')
    g('v_lshrrev_b32 v23, 5, v0')
    g('v_lshlrev_b32 v23, 9, v23')
    g('v_lshl_add_u32 v23, v4, 5, v23')
    g('v_and_b32 v24, 16, v0')
    g('v_add_u32 v23, v23, v24')
    g('v_lshrrev_b32 v25, 5, v0')
    g('v_mul_u32_u24 v25, 40, v25')
    g('v_bfe_u32 v26, v0, 2, 3')
    g('v_add_u32 v25, v25, v26')
    g('v_lshlrev_b32 v25, 11, v25')
    g('v_and_b32 v26, 3, v0')
    g('v_lshl_add_u32 v25, v26, 4, v25')
    g('v_and_b32 v26, 31, v0')
    g('v_cmp_gt_u32 vcc, 20, v26')
    g(f'v_mov_b32 v22, 0x{BIG:x}')
    g(f's_mul_i32 s69, s5, {5*2048}')
    g('v_cndmask_b32 v27, v22, v25, vcc')
    g('s_lshl_b32 s11, s6, 6')
    g('s_add_u32 s69, s69, s11')
    g(f's_add_u32 s69, s69, {YIN}')
    g('v_cmp_gt_u32 vcc, 32, v0')
    g('v_lshlrev_b32 v29, 4, v0')
    g('s_lshl_b32 s70, s6, 3')
    g('v_cndmask_b32 v28, v22, v29, vcc')
    g('s_add_u32 s70, s70, s5')
    g('s_lshl_b32 s70, s70, 9')
    g(f's_add_u32 s70, s70, {OIN}')
    g('v_mov_b32 v88, v22')
    g('s_lshl_b32 s71, s9, 7')
    g(f's_add_u32 s71, s71, {MLIN}')
    g('s_sub_u32 s11, s2, 112')
    g('s_mul_i32 s56, s11, 13108')
    g('s_lshr_b32 s56, s56, 16')
    g('s_mul_i32 s57, s56, 5')
    g('s_sub_u32 s57, s11, s57')
    g('s_lshl_b32 s58, s57, 14')
    g('s_lshl_b32 s11, s56, 6')
    g('s_add_u32 s58, s58, s11')
    g(f's_add_u32 s58, s58, {FIN}')
    g('s_waitcnt lgkmcnt(0)')
    g('s_add_u32 s42, s42, 1')
    g('s_and_b32 s43, s42, 0xff')
    g('v_mov_b32 v92, s43')
    g('s_movk_i32 s60, 0xff00')
    g('s_cmp_eq_u32 s68, 0')
    g('s_cbranch_scc0 L_unit')
    g('s_branch L_bar1a')

    g.label('L_unit')
    g('s_waitcnt vmcnt(23)')
    stamp(1)
    U = 50
    for k in range(10):
        g(f'v_lshlrev_b32 v{U+2*k}, 16, v{XS+k}')
        g(f'v_and_b32 v{U+2*k+1}, 0xffff0000, v{XS+k}')
    g(f'v_pk_add_f32 v[70:71], v[{U}:{U+1}], v[{U+2}:{U+3}]')
    for k in range(2, 10):
        g(f'v_pk_add_f32 v[70:71], v[70:71], v[{U+2*k}:{U+2*k+1}]')
    g('v_add_f32 v70, v70, v71')
    def red_batch(r, t):
        for m in ('row_half_mirror', 'quad_perm:[2,3,0,1]', 'quad_perm:[1,0,3,2]'):
            g('s_nop 1')
            g(f'v_add_f32_dpp v{r}, v{r}, v{r} {m} {DM} bank_mask:0xf')
        rowswaps('v_add_f32', r, t)
    red_batch(70, 71)
    g(f's_mov_b32 s11, 0x{f2u(1.0/640):08x}')
    g('v_mul_f32 v70, s11, v70')
    for k in range(10):
        g(f'v_pk_add_f32 v[{U+2*k}:{U+2*k+1}], v[{U+2*k}:{U+2*k+1}], v[70:71] op_sel_hi:[1,0] neg_lo:[0,1] neg_hi:[0,1]')
    g(f'v_pk_mul_f32 v[72:73], v[{U}:{U+1}], v[{U}:{U+1}]')
    for k in range(1, 10):
        g(f'v_pk_fma_f32 v[72:73], v[{U+2*k}:{U+2*k+1}], v[{U+2*k}:{U+2*k+1}], v[72:73]')
    g('v_add_f32 v72, v72, v73')
    red_batch(72, 73)
    g('v_mul_f32 v72, s11, v72')
    g('v_cvt_pk_bf16_f32 v72, 0, v72')
    g(f'v_add_f32 v72, 0x{f2u(1e-5):08x}, v72')
    g('v_cvt_pk_bf16_f32 v72, 0, v72')
    g('v_sqrt_f32 v72, v72')
    g('v_cvt_pk_bf16_f32 v70, 0, v70')
    g('v_cvt_pk_bf16_f32 v72, 0, v72')
    g('v_rcp_f32 v74, v72')
    g('s_waitcnt vmcnt(20)')
    for k in range(10):
        g(f'v_lshlrev_b32 v{U+2*k}, 16, v{XC+k}')
        g(f'v_and_b32 v{U+2*k+1}, 0xffff0000, v{XC+k}')
    for k in range(10):
        g(f'v_pk_add_f32 v[{U+2*k}:{U+2*k+1}], v[{U+2*k}:{U+2*k+1}], v[70:71] op_sel_hi:[1,0] neg_lo:[0,1] neg_hi:[0,1]')
    for e in range(20):
        g(f'v_cvt_pk_bf16_f32 v{U+e}, 0, v{U+e}')
    for k in range(10):
        p = f'v[{U+2*k}:{U+2*k+1}]'
        g(f'v_pk_mul_f32 v[76:77], {p}, v[74:75] op_sel_hi:[1,0]')
        g(f'v_pk_fma_f32 {p}, v[76:77], v[72:73], {p} op_sel_hi:[1,0,1] neg_lo:[1,0,0] neg_hi:[1,0,0]')
        g(f'v_pk_fma_f32 {p}, {p}, v[74:75], v[76:77] op_sel_hi:[1,0,1]')
    for e in range(20):
        g(f'v_cvt_pk_bf16_f32 v{U+e}, v{U+e}, v{U+e}')
    stamp(2)
    for i in range(20):
        a = 36 + 4*(i & 1)
        for t in range(4):
            g(f'v_and_b32 v{a+t}, v{U+i}, v{6+t}')
        g(f's_waitcnt vmcnt({19-i})')
        g('s_nop 0')
        c_ = '0' if i == 0 else 'v[32:35]'
        g(f'v_mfma_f32_16x16x32_bf16 v[32:35], {vr(a)}, {vr(WB+4*i)}, {c_}')
    g('s_lshl_b32 s13, s64, 3')
    g('s_add_u32 s13, s13, s65')
    g('s_lshl_b32 s13, s13, 10')
    g('s_nop 4')
    tag(32)
    g('buffer_store_dwordx4 v[32:35], v29, s[52:55], s13 offen sc1')
    stamp(3)
    g.label('L_bar1a')
    g('s_barrier')
    g('s_cmp_eq_u32 s10, 0')
    g('s_cbranch_scc0 L_bar1')
    g('v_lshrrev_b32 v36, 5, v0')
    g('v_lshlrev_b32 v36, 10, v36')
    g('v_and_b32 v37, 31, v0')
    g('v_lshl_add_u32 v36, v37, 4, v36')
    g('s_lshl_b32 s13, s6, 13')
    g('s_lshl_b32 s11, s7, 9')
    g('s_add_u32 s13, s13, s11')
    g('s_add_u32 s14, s13, 4096')
    g(f's_mov_b32 s12, {spin}')
    g.label('L_qg')
    for i in range(4):
        g(f'buffer_load_dwordx4 {vr(40+4*i)}, v36, s[52:55], {"s13" if i < 2 else "s14"} offen offset:{2048*(i&1)} sc1')
    g('s_waitcnt vmcnt(0)')
    if diag:
        g(f's_cmp_eq_u32 s12, {spin}')
        g('s_cbranch_scc0 L_qg_ns')
        stamp(13)
        g.label('L_qg_ns')
    untag(40, 16, 37)
    poll_tail('L_qg_ok', 'L_qg', 0)
    if diag:
        g(f's_sub_u32 s92, {spin}, s12')
        g('s_mul_i32 s92, s92, 100')
        g('s_add_u32 s92, s92, s78')
    for r in range(4):
        g(f'v_add_f32 v{40+r}, v{40+r}, v{44+r}')
        g(f'v_add_f32 v{48+r}, v{48+r}, v{52+r}')
    for r in range(4):
        g(f'v_add_f32 v{40+r}, v{40+r}, v{48+r}')
    g(f'ds_write_b128 v23, v[40:43] offset:{L_QP}')
    g('s_waitcnt lgkmcnt(0)')
    g.label('L_bar1')
    stamp(4)
    g('s_barrier')
    if dbgt:
        g('s_memrealtime s[82:83]')
        g('s_waitcnt lgkmcnt(0)')
    stamp(5)
    WOB = 192
    g(f's_mul_i32 s11, s6, {128*1280}')
    g('s_add_u32 s48, s24, s11')
    g('s_addc_u32 s49, s25, 0')
    g(f's_mov_b32 s50, {128*1280}')
    g('s_mov_b32 s51, 0x20000')
    g(f'v_mul_u32_u24 v20, {8*1280}, v3')
    g('v_lshl_add_u32 v20, v4, 4, v20')
    g('v_cmp_gt_u32 vcc, 10, v4')
    g(f's_mul_i32 s11, s10, {32*1280}')
    g('s_mul_i32 s12, s5, 160')
    g('v_cndmask_b32 v20, v22, v20, vcc')
    g('s_add_u32 s11, s11, s12')
    for rg in range(8):
        if rg and rg % 3 == 0:
            g(f's_add_u32 s11, s11, {3*1280}')
        if rg >= WCAP: g(f's_waitcnt vmcnt({WCAP-1})')
        g(f'buffer_load_dwordx4 {vr(WOB+4*rg)}, v20, s[48:51], s11 offen offset:{1280*(rg%3)}{wnt}')
    g('s_cmp_ge_u32 s2, 176')
    g('s_cselect_b32 s11, 1, 0')
    g('s_cmp_eq_u32 s10, 3')
    g('s_cselect_b32 s59, s11, 0')
    g('s_sub_u32 s11, s2, 112')
    g('s_cmp_lt_u32 s11, 135')
    g('s_cselect_b32 s11, 1, 0')
    g('s_cmp_eq_u32 s10, 1')
    g('s_cselect_b32 s13, s11, 0')
    g('s_cmp_eq_u32 s13, 0')
    g('s_cbranch_scc1 L_bark')
    srd(44, 32, 33, 1728*1280)
    srd(48, 30, 31, 3456)
    g(f'v_mul_u32_u24 v20, {16*1280}, v3')
    g('v_lshl_add_u32 v20, v4, 4, v20')
    g(f's_mul_i32 s11, s56, {64*1280}')
    g('s_lshl_b32 s12, s57, 8')
    g('s_add_u32 s11, s11, s12')
    for rg in range(16):
        if rg and rg % 3 == 0:
            g(f's_add_u32 s11, s11, {3*1280}')
        if rg >= 4: g('s_waitcnt vmcnt(3)')
        g(f'buffer_load_dwordx4 {vr(WB+4*rg)}, v20, s[44:47], s11 offen offset:{1280*(rg%3)}{wnt}')
    g('v_lshlrev_b32 v21, 5, v3')
    g('s_lshl_b32 s11, s56, 7')
    g('buffer_load_dwordx4 v[80:83], v21, s[48:51], s11 offen')
    g('buffer_load_dwordx4 v[84:87], v21, s[48:51], s11 offen offset:16')
    g('v_and_b32 v36, 7, v0')
    g('v_lshlrev_b32 v36, 10, v36')
    g('v_lshl_add_u32 v36, v5, 9, v36')
    g('v_lshl_add_u32 v36, v3, 5, v36')
    g('s_lshr_b32 s13, s56, 1')
    g('s_add_u32 s13, s13, 32')
    g('s_lshl_b32 s13, s13, 13')
    g('s_and_b32 s11, s56, 1')
    g('s_lshl_b32 s11, s11, 7')
    g('s_add_u32 s13, s13, s11')
    g(f's_mov_b32 s12, {spin}')
    g.label('L_hg')
    for i in range(4):
        g(f'buffer_load_dwordx4 {vr(48+4*i)}, v36, s[52:55], s13 offen offset:{16*(i>>1) + 256*(i&1)} sc1')
    g('s_waitcnt vmcnt(0)')
    untag(48, 16, 37)
    poll_tail('L_hg_ok', 'L_hg', 8)
    for m in ('row_half_mirror', 'quad_perm:[2,3,0,1]', 'quad_perm:[1,0,3,2]'):
        for e in range(16):
            g(f'v_add_f32_dpp v{48+e}, v{48+e}, v{48+e} {m} {DM} bank_mask:0xf')
    for k in range(8):
        g(f'v_lshlrev_b32 v{64+2*k}, 16, v{80+k}')
        g(f'v_and_b32 v{65+2*k}, 0xffff0000, v{80+k}')
    for e in range(16):
        g(f'v_cvt_pk_bf16_f32 v{48+e}, 0, v{48+e}')
        g(f'v_add_f32 v{48+e}, v{48+e}, v{64+e}')
        g(f'v_cvt_pk_bf16_f32 v{48+e}, 0, v{48+e}')
        g(f'v_cmp_lt_f32 vcc, 0, v{48+e}')
        g('s_nop 1')
        g(f'v_cndmask_b32 v{48+e}, 0, v{48+e}, vcc')
        g(f'v_mul_f32 v{48+e}, v{48+e}, v{48+e}')
        g(f'v_cvt_pk_bf16_f32 v{48+e}, v{48+e}, v{48+e}')
    for i in range(16):
        a = 36 + 4*(i & 1)
        for t in range(4):
            g(f'v_and_b32 v{a+t}, v{48+i}, v{6+t}')
        g('s_nop 1')
        c_ = '0' if i == 0 else 'v[32:35]'
        g(f'v_mfma_f32_16x16x32_bf16 v[32:35], {vr(a)}, {vr(WB+4*i)}, {c_}')
    g('s_nop 7')
    g(f'ds_write_b128 v23, v[32:35] offset:{L_YP+1024}')
    g('s_waitcnt lgkmcnt(0)')
    g(f'ds_read_b128 v[32:35], v29 offset:{L_YP+1024}')
    g('s_waitcnt lgkmcnt(0)')
    tag(32)
    g('buffer_store_dwordx4 v[32:35], v25, s[52:55], s58 offen sc1')
    g.label('L_bark')
    stamp(6)
    g('s_barrier')
    g('s_cmp_lg_u32 s59, 0')
    g('s_cbranch_scc1 L_cons')
    g('s_cmp_eq_u32 s10, 2')
    g('s_cbranch_scc1 L_ml')
    g('s_barrier')
    g('s_branch L_bar2')

    g.label('L_ml')
    g('v_and_b32 v21, 3, v0')
    g('v_lshlrev_b32 v21, 3, v21')
    g(f'ds_read_b64 v[30:31], v21 offset:{L_MLW}')
    g('s_waitcnt lgkmcnt(0)')
    def quadred(op, r):
        g('s_nop 1')
        g(f'{op}_dpp v{r}, v{r}, v{r} quad_perm:[2,3,0,1] {DM} bank_mask:0xf')
        g('s_nop 1')
        g(f'{op}_dpp v{r}, v{r}, v{r} quad_perm:[1,0,3,2] {DM} bank_mask:0xf')
    g('v_mov_b32 v32, v30')
    quadred('v_max_f32', 32)
    g('v_sub_f32 v33, v30, v32')
    g('v_exp_f32 v33, v33')
    g('s_nop 0')
    g('v_mul_f32 v33, v33, v31')
    quadred('v_add_f32', 33)
    g('v_mov_b32 v40, v32')
    g('v_mov_b32 v41, s42')
    g('v_mov_b32 v42, v33')
    g('v_mov_b32 v43, s42')
    g('s_lshl_b32 s11, s8, 4')
    g('v_mov_b32 v36, s11')
    g('v_lshlrev_b32 v38, 1, v21')
    g('s_mov_b64 exec, 1')
    g('buffer_store_dwordx4 v[40:43], v36, s[52:55], s71 offen sc1')
    g('s_mov_b64 exec, -1')
    g(f's_mov_b32 s12, {spin}')
    g('s_barrier')
    g.label('L_mlg')
    g('buffer_load_dwordx4 v[44:47], v38, s[52:55], s71 offen sc1')
    g('s_waitcnt vmcnt(0)')
    g('v_xor_b32 v45, s42, v45')
    g('v_xor_b32 v47, s42, v47')
    g('v_or_b32 v36, v45, v47')
    g('v_cmp_ne_u32 vcc, 0, v36')
    poll_tail('L_mlg_ok', 'L_mlg', 16)
    g('v_mov_b32 v34, v44')
    g('v_mov_b32 v35, v46')
    g('v_mov_b32 v32, v34')
    quadred('v_max_f32', 32)
    g('v_sub_f32 v33, v34, v32')
    g('v_exp_f32 v33, v33')
    g('s_nop 0')
    g('v_mul_f32 v33, v33, v35')
    quadred('v_add_f32', 33)
    g('v_sub_f32 v30, v30, v32')
    g('v_exp_f32 v30, v30')
    g('v_rcp_f32 v33, v33')
    g('s_nop 0')
    g('v_mul_f32 v30, v30, v33')
    g('v_lshrrev_b32 v21, 1, v21')
    g(f'ds_write_b32 v21, v30 offset:{L_FAC}')
    g('s_waitcnt lgkmcnt(0)')
    g('s_branch L_bar2')

    g.label('L_cons')
    srd(44, 16, 17, 2560)
    srd(48, 34, 35, 1280)
    g('s_sub_u32 s15, s2, 176')
    g('v_and_b32 v88, 3, v0')
    g('v_lshl_add_u32 v88, v88, 2, v3')
    g('s_lshl_b32 s11, s15, 4')
    g('v_add_u32 v88, s11, v88')
    g('v_lshlrev_b32 v88, 1, v88')
    g('buffer_load_ushort v90, v88, s[44:47], 0 offen')
    g('s_cmp_ge_u32 s15, 40')
    g('s_cselect_b32 s11, 1280, 0')
    g('v_subrev_u32 v36, s11, v88')
    g('buffer_load_ushort v91, v36, s[48:51], 0 offen')
    g('v_cmp_gt_u32 vcc, 44, v0')
    g('s_lshl_b32 s13, s15, 11')
    g(f's_add_u32 s13, s13, {FIN}')
    g('v_cndmask_b32 v36, v22, v29, vcc')
    g('v_cndmask_b32 v38, v92, 0, vcc')
    g(f's_mov_b32 s12, {spin}')
    g.label('L_fg')
    g('buffer_load_dwordx4 v[40:43], v29, s[52:55], s13 offen sc1')
    g('buffer_load_dwordx4 v[44:47], v36, s[52:55], s13 offen offset:1024 sc1')
    g('s_waitcnt vmcnt(0)')
    for r in range(4):
        g(f'v_or_b32 v{44+r}, v{44+r}, v38')
    def chk8(a, t):
        untag(a, 8, t)
    chk8(40, 37)
    poll_tail('L_fg_ok', 'L_fg', 16)
    def red16(a):
        for r in range(4):
            g(f'v_add_f32 v{a+r}, v{a+r}, v{a+4+r}')
        for m in ('row_ror:4', 'row_ror:8'):
            for r in range(4):
                g(f'v_add_f32_dpp v{a+r}, v{a+r}, v{a+r} {m} {DM} bank_mask:0xf')
        g('s_nop 0')
        g(f'v_permlane16_swap_b32 v{a}, v{a+1}')
        g(f'v_permlane16_swap_b32 v{a+2}, v{a+3}')
        g('s_nop 0')
        g(f'v_add_f32 v{a}, v{a}, v{a+1}')
        g(f'v_add_f32 v{a+2}, v{a+2}, v{a+3}')
        g('s_nop 1')
        g(f'v_permlane32_swap_b32 v{a}, v{a+2}')
        g('s_nop 1')
        g(f'v_add_f32 v{a}, v{a}, v{a+2}')
    red16(40)
    g('v_cvt_pk_bf16_f32 v32, 0, v40')
    g('v_lshlrev_b32 v91, 16, v91')
    g('v_lshlrev_b32 v90, 16, v90')
    g('v_add_f32 v32, v32, v91')
    g('v_cvt_pk_bf16_f32 v32, 0, v32')
    g(f'v_mul_f32 v33, 0x{f2u(-log2e):08x}, v32')
    g('v_exp_f32 v33, v33')
    g('s_nop 0')
    g('v_add_f32 v33, 1.0, v33')
    g('v_rcp_f32 v33, v33')
    g('s_nop 0')
    g('v_mul_f32 v32, v32, v33')
    g('v_cvt_pk_bf16_f32 v91, 0, v32')
    g('s_barrier')

    g.label('L_bar2')
    srd(44, 36, 37, 2560)
    g('v_and_b32 v20, 3, v0')
    g('v_lshl_add_u32 v20, v5, 2, v20')
    g('v_lshlrev_b32 v20, 9, v20')
    g('v_lshl_add_u32 v20, v3, 5, v20')
    g('s_lshl_b32 s11, s10, 7')
    g('v_add_u32 v20, s11, v20')
    g('s_lshl_b32 s13, s6, 12')
    g(f's_add_u32 s13, s13, {OIN}')
    g('v_mov_b32 v21, 0')
    g('v_and_b32 v30, 0x1f0, v29')
    g('s_lshl_b32 s11, s10, 10')
    g('v_add_u32 v31, s11, v23')
    g('s_sub_u32 s15, s2, 176')
    g('s_lshl_b32 s15, s15, 11')
    g(f's_add_u32 s15, s15, {YIN}')
    g(f's_mov_b32 s12, {spin}')
    g('s_waitcnt vmcnt(0)')
    stamp(7)
    g('s_barrier')
    if dbgt:
        g('s_memrealtime s[80:81]')
        g('s_waitcnt lgkmcnt(0)')
    stamp(8)
    g('s_cmp_eq_u32 s10, 0')
    g('s_cbranch_scc0 L_og')
    g(f'ds_read_b128 v[64:67], v21 offset:{L_FAC}')
    for u in range(4):
        g(f'ds_read_b128 {vr(48+4*u)}, v30 offset:{L_OP+512*u}')
    g('s_waitcnt lgkmcnt(3)')
    for e in range(4):
        g(f'v_mul_f32 v{48+e}, v64, v{48+e}')
    for u in range(1, 4):
        g(f's_waitcnt lgkmcnt({3-u})')
        for e in range(4):
            g(f'v_fmac_f32 v{48+e}, v{64+u}, v{48+4*u+e}')
    tag(48)
    g('buffer_store_dwordx4 v[48:51], v28, s[52:55], s70 offen sc1')
    g.label('L_og')
    g('buffer_load_dwordx4 v[40:43], v20, s[52:55], s13 offen sc1')
    g('buffer_load_dwordx4 v[44:47], v20, s[52:55], s13 offen offset:16 sc1')
    g('s_waitcnt vmcnt(0)')
    chk8(40, 37)
    poll_tail('L_og_ok', 'L_og', 0)
    stamp(9)
    for m in ('quad_perm:[2,3,0,1]', 'quad_perm:[1,0,3,2]'):
        for e in range(8):
            g(f'v_add_f32_dpp v{40+e}, v{40+e}, v{40+e} {m} {DM} bank_mask:0xf')
    for e in range(8):
        g(f'v_cvt_pk_bf16_f32 v{40+e}, v{40+e}, v{40+e}')
    def buildA(a, rg):
        for t in range(4):
            g(f'v_and_b32 v{a+t}, v{40+rg}, v{6+t}')
    buildA(52, 0)
    for rg in range(8):
        a = 52 + 4*(rg & 1)
        if rg < 7:
            buildA(52 + 4*((rg+1) & 1), rg+1)
        else:
            g('s_nop 0')
        c_ = '0' if rg == 0 else 'v[32:35]'
        g(f'v_mfma_f32_16x16x32_bf16 v[32:35], {vr(a)}, {vr(WOB+4*rg)}, {c_}')
    g('s_nop 7')
    g(f'ds_write_b128 v31, v[32:35] offset:{L_YP}')
    g('s_waitcnt lgkmcnt(0)')
    g('s_barrier')
    g('s_cmp_eq_u32 s10, 3')
    g('s_cbranch_scc0 L_hend')
    for u in range(4):
        g(f'ds_read_b128 {vr(48+4*u)}, v29 offset:{L_YP+1024*u}')
    g('s_waitcnt lgkmcnt(2)')
    for r in range(4):
        g(f'v_add_f32 v{48+r}, v{48+r}, v{52+r}')
    g('s_waitcnt lgkmcnt(0)')
    for r in range(4):
        g(f'v_add_f32 v{56+r}, v{56+r}, v{60+r}')
    for r in range(4):
        g(f'v_add_f32 v{48+r}, v{48+r}, v{56+r}')
    tag(48)
    g('buffer_store_dwordx4 v[48:51], v27, s[52:55], s69 offen sc1')
    stamp(10)
    g('s_cmp_eq_u32 s59, 0')
    g('s_cbranch_scc1 L_hend')
    g(f's_mov_b32 s12, {spin}')
    g.label('L_yg')
    g('buffer_load_dwordx4 v[40:43], v29, s[52:55], s15 offen sc1')
    g('buffer_load_dwordx4 v[44:47], v29, s[52:55], s15 offen offset:1024 sc1')
    g('s_waitcnt vmcnt(0)')
    chk8(40, 37)
    poll_tail('L_yg_ok', 'L_yg', 0)
    red16(40)
    g('v_cvt_pk_bf16_f32 v32, 0, v40')
    g('v_mul_f32 v32, v32, v91')
    g('v_cvt_pk_bf16_f32 v32, 0, v32')
    g('v_add_f32 v32, v32, v90')
    g('v_cvt_pk_bf16_f32 v32, v32, v32')
    g('buffer_store_short v32, v88, s[44:47], 0 offen')
    g('s_cmp_eq_u32 s2, 176')
    g('s_cbranch_scc0 L_nobump')
    g('v_mov_b32 v33, s42')
    g(f's_mov_b32 s11, {EPOCH}')
    g('s_mov_b64 exec, 1')
    g('buffer_store_dword v33, v21, s[52:55], s11 offen sc1')
    g.label('L_nobump')
    stamp(11)
    g.label('L_hend')
    if dbgt:
        g('s_cmp_eq_u32 s10, 3')
        g('s_cbranch_scc0 L_exit')
        g('s_memrealtime s[76:77]')
        srd(72, 38, 39, 256)
        g('s_waitcnt lgkmcnt(0)')
        g('s_mov_b64 exec, 1')
        g('v_mov_b32 v8, 0')
        g('v_mov_b32 v4, s76')
        g('s_not_b32 s79, s78')
        g('v_mov_b32 v5, s79')
        g('v_mov_b32 v6, s78')
        g('v_mov_b32 v7, s80')
        g('s_not_b32 s79, s80')
        g('v_mov_b32 v9, s79')
        g('v_mov_b32 v10, s82')
        g('s_not_b32 s79, s82')
        g('v_mov_b32 v11, s79')
        g('buffer_atomic_umax v4, v8, s[72:75], 0 offen')
        g('buffer_atomic_umax v5, v8, s[72:75], 0 offen offset:4')
        g('buffer_atomic_umax v6, v8, s[72:75], 0 offen offset:8')
        g('buffer_atomic_umax v7, v8, s[72:75], 0 offen offset:12')
        g('buffer_atomic_umax v9, v8, s[72:75], 0 offen offset:16')
        g('buffer_atomic_umax v10, v8, s[72:75], 0 offen offset:20')
        g('buffer_atomic_umax v11, v8, s[72:75], 0 offen offset:24')
    stamp_flush()
    g.label('L_exit')
    g('s_endpgm')

    out = HEADER
    out += f"; @launch grid=(256,1,1) block=(512,1,1) lds={LDS_SZ}\n"
    out += '.amdgcn_target "amdgcn-amd-amdhsa--gfx950"\n.text\n'
    out += f'.globl {NAME}_kernel\n.p2align 8\n.type {NAME}_kernel,@function\n{NAME}_kernel:\n'
    out += '\n'.join(g.L) + '\n'
    out += f""".section .rodata,"a"
.p2align 6
.amdhsa_kernel {NAME}_kernel
  .amdhsa_next_free_vgpr 256
  .amdhsa_next_free_sgpr 96
  .amdhsa_accum_offset 256
  .amdhsa_group_segment_fixed_size 0
  .amdhsa_kernarg_size 104
  .amdhsa_user_sgpr_count 2
  .amdhsa_user_sgpr_kernarg_segment_ptr 1
  .amdhsa_system_sgpr_workgroup_id_x 1
  .amdhsa_float_denorm_mode_32 3
.end_amdhsa_kernel
"""
    return out

if __name__ == '__main__':
    kw = eval('dict(' + (sys.argv[2] if len(sys.argv) > 2 else '') + ')')
    open(sys.argv[1], 'w').write(gen(**kw))
```

```python
import sys, math, struct
from gen import NAME, HEADER, f2u, G, vr

UIN = 0
UIN_SZ = 46*8*1024
OIN = UIN + UIN_SZ
OIN_SZ = 256*512
YIN = OIN + OIN_SZ
YIN_SZ = 80*2048
FIN = YIN + YIN_SZ
FIN_SZ = 80*2048
MLIN = FIN + FIN_SZ
MLIN_SZ = 64*128
EPOCH = MLIN + MLIN_SZ
WS_USED = EPOCH + 128
STAMP = 4 << 20
BIG = 0x7ffff000

L_QP = 0
L_MLW = 1024
L_FAC = L_MLW + 32
L_OP = L_FAC + 32
L_YP = L_OP + 2048
LDS_SZ = L_YP + 4096

def gen(NS=3, PB=8, VB=6, PCAP=6, WCAP=8, SCAP=6, VCAP=6, VEND=16, VSW=6, rot=1, diag=False, wnt=' nt', mimic=True, hfirst=True, kvmod=' nt',
        spin=1<<17, abl='', UCAP=20, dbgt=False, qspread=True, trip=None):
    R = NS * 16
    if 'x' in abl or 'p' in abl: spin = 0
    g = G()
    DM = 'row_mask:0xf'
    def stamp(idx):
        if diag:
            g(f's_memrealtime s[76:77]')
            g('s_waitcnt lgkmcnt(0)')
            g(f's_mov_b32 s{80+idx}, s76')
    def stamp_flush():
        if diag:
            g('s_lshl_b32 s76, s2, 3')
            g('s_add_u32 s76, s76, s3')
            g('s_lshl_b32 s76, s76, 6')
            g(f's_add_u32 s76, s76, {STAMP}')
            g('s_mov_b64 exec, 1')
            for q in range(4):
                for r in range(4):
                    g(f'v_mov_b32 v{4+r}, s{80+4*q+r}')
                g('v_mov_b32 v8, 0')
                g(f'buffer_store_dwordx4 v[4:7], v8, s[72:75], s76 offen offset:{16*q}')
                g('s_nop 1')
            g('s_waitcnt vmcnt(0)')
    def srd(d, lo, hi, size):
        g(f's_mov_b32 s{d}, s{lo}')
        g(f's_mov_b32 s{d+1}, s{hi}')
        g(f's_mov_b32 s{d+2}, {size}')
        g(f's_mov_b32 s{d+3}, 0x20000')
    def masks():
        g('v_and_b32 v2, 1, v0')
        g('v_lshlrev_b32 v2, 4, v2')
        g('v_mov_b32 v3, 0xffff')
        g('v_lshlrev_b32 v3, v2, v3')
        g('v_bfe_u32 v2, v0, 1, 2')
        for t in range(4):
            g(f'v_cmp_eq_u32 vcc, {t}, v2')
            g('s_nop 1')
            g(f'v_cndmask_b32 v{6+t}, 0, v3, vcc')
    lab = [0]
    def poll_tail(okl, againl, sleep):
        g('s_sub_u32 s12, s12, 1')
        g(f's_cbranch_scc1 {okl}')
        if sleep:
            g(f's_cbranch_vccz {okl}')
            g(f's_sleep {sleep}')
            g(f's_branch {againl}')
        else:
            g(f's_cbranch_vccnz {againl}')
        g.label(okl)

    def tag(a, n=4):
        for r in range(n):
            g(f'v_and_or_b32 v{a+r}, v{a+r}, s60, v92')
    def untag(a, n, t):
        for r in range(n):
            g(f'v_xor_b32 v{a+r}, s43, v{a+r}')
        g(f'v_or3_b32 v{t}, v{a}, v{a+1}, v{a+2}')
        for e in range(3, n-1, 2):
            g(f'v_or3_b32 v{t}, v{t}, v{a+e}, v{a+e+1}')
        g(f'v_or_b32 v{t}, v{t}, v{a+n-1}')
        g(f'v_and_b32 v{t}, 0xff, v{t}')
        g(f'v_cmp_ne_u32 vcc, 0, v{t}')
    g('s_cmp_ge_u32 s2, 256')
    g('s_cbranch_scc1 L_exit')
    if diag or dbgt or trip:
        g('s_memrealtime s[78:79]')
    g('s_load_dwordx16 s[16:31], s[0:1], 0')
    g('s_load_dwordx8 s[32:39], s[0:1], 64')
    g('s_load_dwordx2 s[40:41], s[0:1], 96')
    g('v_lshrrev_b32 v1, 6, v0')
    g('v_and_b32 v0, 63, v0')
    g('v_readfirstlane_b32 s3, v1')
    g('s_and_b32 s4, s2, 7')
    g('s_lshr_b32 s5, s2, 3')
    g('s_lshr_b32 s6, s5, 3')
    g('s_lshl_b32 s7, s4, 2')
    g('s_add_u32 s6, s6, s7')
    g('s_bfe_u32 s7, s5, 0x10002')
    g('s_and_b32 s8, s5, 3')
    g('s_and_b32 s5, s5, 7')
    g('s_lshl_b32 s9, s7, 5')
    g('s_add_u32 s9, s9, s6')
    g('s_and_b32 s10, s3, 3')
    if diag:
        for i in range(16):
            g(f's_mov_b32 s{80+i}, 0')
    g('s_cmp_ge_u32 s3, 4')
    g('s_cbranch_scc%d L_helper' % (0 if hfirst else 1))

    RB = 64
    def slot(k, s): return RB + 4*(16*k + s)
    g('v_lshlrev_b32 v1, 4, v0')
    g('s_lshl_b32 s13, s8, 2')
    g('s_add_u32 s13, s13, s10')
    g('s_lshl_b32 s13, s13, 12')
    if rot:
        g(f's_mul_i32 s14, s9, {rot*65536}')
        g('s_add_u32 s13, s13, s14')
        g('s_and_b32 s13, s13, 0x1fffff')
    g('s_lshl_b32 s11, s9, 21')
    g('s_mov_b32 s46, 0x200000')
    g('s_mov_b32 s47, 0x20000')
    g('s_waitcnt lgkmcnt(0)')
    g('s_add_u32 s44, s18, s11')
    g('s_addc_u32 s45, s19, 0')
    def issue_piece(k, pc, cap, first=10**9, cap2=None):
        for i in range(4):
            r = slot(k, 4*pc+i)
            if first + i >= cap:
                if cap2 is not None:
                    lab[0] += 1
                    g(f's_cbranch_scc1 L_c{lab[0]}')
                    g(f's_waitcnt vmcnt({cap-1})')
                    g.label(f'L_c{lab[0]}')
                    if cap2 < 16: g(f's_waitcnt vmcnt({cap2-1})')
                else:
                    g(f's_waitcnt vmcnt({cap-1})')
            g(f'buffer_load_dwordx4 {vr(r)}, v1, s[44:47], s13 offen offset:{1024*i}{kvmod}')
        g('s_add_u32 s13, s13, 0x10000')
        g('s_and_b32 s13, s13, 0x1fffff')
    issue_piece(0, 0, PCAP, 0)
    g('s_add_u32 s48, s20, s11')
    g('s_addc_u32 s49, s21, 0')
    if diag:
        srd(72, 40, 41, STAMP + (1<<20))
        g('s_mov_b32 s80, s78')
    masks()
    g(f's_mov_b32 s14, {NS}')
    g('s_mov_b32 s50, 0xcccccccc')
    g('s_mov_b32 s51, 0xcccccccc')
    g('s_mov_b32 s52, 0xaaaaaaaa')
    g('s_mov_b32 s53, 0xaaaaaaaa')
    g('v_and_b32 v28, 15, v0')
    g('v_lshlrev_b32 v28, 5, v28')
    for k in range(NS):
        for pc in range(4):
            if k or pc:
                issue_piece(k, pc, PCAP, 16*k+4*pc)
                if diag:
                    g('s_memrealtime s[76:77]')
                    g('s_waitcnt lgkmcnt(0)')
                    g(f'v_writelane_b32 v63, s76, {32+4*k+pc}')
                if 4*k+pc == PB:
                    g('s_barrier')
    stamp(1)
    g('s_barrier')
    stamp(2)
    for u in range(2):
        g(f'ds_read_b128 {vr(32+8*u)}, v28 offset:{L_QP+512*u}')
        g(f'ds_read_b128 {vr(36+8*u)}, v28 offset:{L_QP+512*u+16}')
    g('s_waitcnt lgkmcnt(0)')
    for e in range(8):
        g(f'v_add_f32 v{32+e}, v{32+e}, v{40+e}')
    for t in range(4):
        g(f'v_cvt_pk_bf16_f32 v{2+t}, v{32+2*t}, v{33+2*t}')

    def blk_stamp():
        if diag:
            g('s_memrealtime s[76:77]')
            g('s_mov_b32 m0, s14')
            g('s_waitcnt lgkmcnt(0)')
            g('v_writelane_b32 v63, s76, m0')
    def kblock(k):
        blk_stamp()
        g('s_cmp_eq_u32 s14, 8')
        g('s_cselect_b32 s44, s48, s44')
        g('s_cselect_b32 s45, s49, s45')
        g('s_cmp_le_u32 s14, 8')
        g('s_cselect_b64 vcc, -1, 0')
        g('s_add_u32 s14, s14, 1')
        for pc in range(4):
            for t in range(4):
                for i in range(4):
                    r = slot(k, 4*pc+i) + t
                    if t == 0:
                        g(f'v_dot2_f32_bf16 v{18+i}, v{r}, v2, 0')
                    else:
                        g(f'v_dot2c_f32_bf16 v{18+i}, v{r}, v{2+t}')
            g('s_nop 2')
            g(f'v_add_f32_dpp v22, v18, v18 row_ror:8 {DM} bank_mask:0x3')
            g(f'v_add_f32_dpp v23, v20, v20 row_ror:8 {DM} bank_mask:0x3')
            g(f'v_add_f32_dpp v22, v19, v19 row_ror:8 {DM} bank_mask:0xc')
            g(f'v_add_f32_dpp v23, v21, v21 row_ror:8 {DM} bank_mask:0xc')
            g('s_nop 0')
            g(f'v_add_f32_dpp v{24+pc}, v22, v22 row_shl:4 {DM} bank_mask:0x5')
            g(f'v_add_f32_dpp v{24+pc}, v23, v23 row_shr:4 {DM} bank_mask:0xa')
            g(f's_cbranch_vccz L_kni{k}_{pc}')
            issue_piece(k, pc, SCAP)
            g.label(f'L_kni{k}_{pc}')
        for e in range(7):
            g(f'v_mov_b32 v{10+e}, v{11+e}')
        for pc in range(4):
            g(f'v_add_f32_dpp v{24+pc}, v{24+pc}, v{24+pc} quad_perm:[2,3,0,1] {DM} bank_mask:0xf')
        g('v_cndmask_b32 v24, v24, v25, s[50:51]')
        g('v_cndmask_b32 v26, v26, v27, s[50:51]')
        g('s_nop 0')
        g(f'v_add_f32_dpp v24, v24, v24 quad_perm:[1,0,3,2] {DM} bank_mask:0xf')
        g(f'v_add_f32_dpp v26, v26, v26 quad_perm:[1,0,3,2] {DM} bank_mask:0xf')
        g('v_cndmask_b32 v17, v24, v26, s[52:53]')
    def pi(pc, i): return 8*(i & 1) + 4*(i >> 1) + 2*(pc & 1) + (pc >> 1)
    def vblock(k):
        blk_stamp()
        g(f's_cmp_lt_u32 s14, {15+NS}')
        g('s_cselect_b64 vcc, -1, 0')
        g('s_add_u32 s14, s14, 1')
        for pc in range(4):
            for i in range(4):
                for t in range(4):
                    g(f'v_and_b32_dpp v{36+4*i+t}, v10, v{6+t} row_newbcast:{pi(pc,i)} {DM} bank_mask:0xf')
            g('s_waitcnt vmcnt(12)')
            if pc:
                g(f's_cbranch_vccnz L_vgo{pc}')
                g(f's_waitcnt vmcnt({12-4*pc})')
                g.label(f'L_vgo{pc}')
            else:
                g('s_nop 0')
            for i in range(4):
                r = slot(k, 4*pc+i)
                g(f'v_mfma_f32_16x16x32_bf16 v[32:35], {vr(36+4*i)}, {vr(r)}, v[32:35]')
            g(f's_cbranch_vccz L_vni{pc}')
            if VEND != VCAP:
                g(f's_cmp_gt_u32 s14, {8+NS+VSW}')
                issue_piece(k, pc, VCAP, cap2=VEND)
            else:
                issue_piece(k, pc, VCAP)
            g.label(f'L_vni{pc}')
        for e in range(7):
            g(f'v_mov_b32 v{10+e}, v{11+e}')

    g.label('L_kloop')
    for k in range(NS):
        kblock(k)
        if k == (7 % NS):
            g(f's_cmp_eq_u32 s14, {8+NS}')
            if k == NS-1:
                g('s_cbranch_scc0 L_kloop')
            else:
                g('s_cbranch_scc1 L_soft')
    if (7 % NS) != NS-1:
        g('s_branch L_kloop')
    g.label('L_soft')
    stamp(3)
    scale = 128 ** -0.5
    log2e = math.log2(math.e)
    if mimic:
        g(f's_mov_b32 s54, 0x{f2u(scale):08x}')
        g(f's_mov_b32 s55, 0x{f2u(log2e):08x}')
        for e in range(8):
            g(f'v_cvt_pk_bf16_f32 v{10+e}, 0, v{10+e}')
        for e in range(8):
            g(f'v_mul_f32 v{10+e}, s54, v{10+e}')
        for e in range(8):
            g(f'v_cvt_pk_bf16_f32 v{10+e}, 0, v{10+e}')
        for e in range(8):
            g(f'v_mul_f32 v{10+e}, s55, v{10+e}')
    else:
        g(f's_mov_b32 s55, 0x{f2u(scale*log2e):08x}')
        for e in range(8):
            g(f'v_mul_f32 v{10+e}, s55, v{10+e}')
    def rowswaps(op, r, t):
        for sw in ('v_permlane16_swap_b32', 'v_permlane32_swap_b32'):
            g(f'v_mov_b32 v{t}, v{r}')
            g('s_nop 1')
            g(f'{sw} v{r}, v{t}')
            g('s_nop 1')
            g(f'{op} v{r}, v{r}, v{t}')
    def allreduce(op, r, t):
        g('s_nop 1')
        for m in ('row_ror:8', 'row_ror:4', 'row_ror:2', 'row_ror:1'):
            g(f'{op}_dpp v{r}, v{r}, v{r} {m} {DM} bank_mask:0xf')
            g('s_nop 1')
        rowswaps(op, r, t)
    g('v_max3_f32 v18, v10, v11, v12')
    g('v_max3_f32 v19, v13, v14, v15')
    g('v_max3_f32 v18, v18, v16, v17')
    g('v_max_f32 v18, v18, v19')
    allreduce('v_max_f32', 18, 20)
    for e in range(8):
        g(f'v_sub_f32 v{10+e}, v{10+e}, v18')
    for e in range(8):
        g(f'v_exp_f32 v{10+e}, v{10+e}')
    g('s_nop 0')
    g('v_add_f32 v19, v10, v11')
    g('v_add_f32 v20, v12, v13')
    g('v_add_f32 v21, v14, v15')
    g('v_add_f32 v22, v16, v17')
    g('v_add_f32 v19, v19, v20')
    g('v_add_f32 v21, v21, v22')
    g('v_add_f32 v19, v19, v21')
    allreduce('v_add_f32', 19, 20)
    for e in range(8):
        g(f'v_cvt_pk_bf16_f32 v{10+e}, v{10+e}, v{10+e}')
    g('s_lshl_b32 s15, s10, 3')
    g('v_mov_b32 v20, s15')
    g(f'ds_write_b64 v20, v[18:19] offset:{L_MLW}')
    for r in range(4):
        g(f'v_mov_b32 v{32+r}, 0')
    g('v_and_b32 v29, 16, v0')
    g('v_add_u32 v28, v28, v29')
    g('s_lshl_b32 s15, s10, 9')
    g('v_add_u32 v28, s15, v28')
    g('s_waitcnt lgkmcnt(0)')
    g('s_barrier')
    g.label('L_vloop')
    g(f's_cmp_eq_u32 s14, {8+NS+VB}')
    g('s_cbranch_scc0 L_vnb')
    g('s_barrier')
    g.label('L_vnb')
    vblock(8 % NS)
    g('s_cbranch_vccnz L_vloop')
    g(f'ds_write_b128 v28, v[32:35] offset:{L_OP}')
    g('s_waitcnt lgkmcnt(0)')
    stamp(4)
    g('s_barrier')
    if diag:
        g('s_lshl_b32 s76, s2, 3')
        g('s_add_u32 s76, s76, s3')
        g('s_lshl_b32 s76, s76, 8')
        g(f's_add_u32 s76, s76, {STAMP + (1<<18)}')
        g('v_lshlrev_b32 v8, 2, v0')
        g('buffer_store_dword v63, v8, s[72:75], s76 offen')
    stamp_flush()
    g('s_endpgm')

    g.label('L_helper')
    g('v_lshrrev_b32 v3, 4, v0')
    g('v_and_b32 v4, 15, v0')
    g('v_bfe_u32 v5, v0, 3, 1')
    g('s_lshr_b32 s13, s2, 3')
    g('s_add_u32 s14, s13, 32')
    g('s_cmp_eq_u32 s10, 0')
    g('s_cselect_b32 s64, %s, s14' % ('s13' if qspread else 's6'))
    g('s_cselect_b32 s65, %s, s4' % ('s4' if qspread else 's5'))
    g('s_movk_i32 s14, 3456')
    g('s_cselect_b32 s66, 0x2000, s14')
    g('s_cselect_b32 s67, %s, s13' % ('s13' if qspread else 's6'))
    g('s_lshl_b32 s67, s67, 8')
    g('s_cmp_lt_u32 s2, 112')
    g('s_cselect_b32 s68, 2, 1')
    g('s_cmp_lt_u32 s10, s68')
    g('s_cselect_b32 s68, 1, 0')
    g('v_and_b32 v1, 7, v0')
    g('v_lshl_add_u32 v1, v3, 3, v1')
    g('v_mul_u32_u24 v1, 40, v1')
    g('v_mul_u32_u24 v20, 1280, v5')
    g('v_add_u32 v1, v1, v20')
    g('s_lshl_b32 s11, s65, 2')
    g('v_add_u32 v2, s11, v3')
    g('v_mul_u32_u24 v2, 40, v2')
    g('v_add_u32 v2, v2, v20')
    g('s_mul_i32 s11, s66, 20')
    g('v_mul_u32_u24 v21, s11, v3')
    g('v_lshl_add_u32 v21, v4, 4, v21')
    g('s_cmp_eq_u32 s64, 45')
    g('s_cselect_b32 s11, 8, 16')
    g('v_cmp_gt_u32 vcc, s11, v4')
    g(f'v_mov_b32 v22, 0x{BIG:x}')
    g('s_mul_i32 s12, s65, 80')
    g('v_cndmask_b32 v21, v22, v21, vcc')
    g('s_mul_i32 s12, s12, s66')
    g('s_add_u32 s12, s12, s67')
    g('s_mul_i32 s50, s66, 640')
    g('s_mov_b32 s51, 0x20000')
    g('s_movk_i32 s46, 2560')
    g('s_mov_b32 s47, 0x20000')
    g('s_cmp_eq_u32 s10, 0')
    g('s_waitcnt lgkmcnt(0)')
    g(f's_load_dword s42, s[40:41], {EPOCH}')
    g('s_mov_b32 s44, s16')
    g('s_mov_b32 s45, s17')
    g('s_cselect_b32 s48, s22, s28')
    g('s_cselect_b32 s49, s23, s29')
    if diag:
        srd(72, 40, 41, STAMP + (1<<20))
        g('s_mov_b32 s80, s78')
    if 'h' in abl:
        stamp_flush()
        g('s_endpgm')
    if 'w' in abl: g('s_mov_b32 s50, 0')
    g('s_cmp_eq_u32 s68, 0')
    g('s_cbranch_scc1 L_noload')
    XS, XC, WB = 30, 40, 96
    for base, vo in ((XS, 'v1'), (XC, 'v2')):
        g(f'buffer_load_dwordx4 {vr(base)}, {vo}, s[44:47], 0 offen')
        g(f'buffer_load_dwordx4 {vr(base+4)}, {vo}, s[44:47], 0 offen offset:16')
        g(f'buffer_load_dwordx2 {vr(base+8,2)}, {vo}, s[44:47], 0 offen offset:32')
    for i in range(20):
        g(f'buffer_load_dwordx4 {vr(WB+4*i)}, v21, s[48:51], s12 offen{wnt}')
        if i < 19: g('s_add_u32 s12, s12, s66')
    g.label('L_noload')
    srd(52, 40, 41, WS_USED)
    masks()
    g('v_lshrrev_b32 v3, 4, v0')
    g('v_lshrrev_b32 v23, 5, v0')
    g('v_lshlrev_b32 v23, 9, v23')
    g('v_lshl_add_u32 v23, v4, 5, v23')
    g('v_and_b32 v24, 16, v0')
    g('v_add_u32 v23, v23, v24')
    g('v_lshrrev_b32 v25, 5, v0')
    g('v_mul_u32_u24 v25, 40, v25')
    g('v_bfe_u32 v26, v0, 2, 3')
    g('v_add_u32 v25, v25, v26')
    g('v_lshlrev_b32 v25, 11, v25')
    g('v_and_b32 v26, 3, v0')
    g('v_lshl_add_u32 v25, v26, 4, v25')
    g('v_and_b32 v26, 31, v0')
    g('v_cmp_gt_u32 vcc, 20, v26')
    g(f'v_mov_b32 v22, 0x{BIG:x}')
    g(f's_mul_i32 s69, s5, {5*2048}')
    g('v_cndmask_b32 v27, v22, v25, vcc')
    g('s_lshl_b32 s11, s6, 6')
    g('s_add_u32 s69, s69, s11')
    g(f's_add_u32 s69, s69, {YIN}')
    g('v_cmp_gt_u32 vcc, 32, v0')
    g('v_lshlrev_b32 v29, 4, v0')
    g('s_lshl_b32 s70, s6, 3')
    g('v_cndmask_b32 v28, v22, v29, vcc')
    g('s_add_u32 s70, s70, s5')
    g('s_lshl_b32 s70, s70, 9')
    g(f's_add_u32 s70, s70, {OIN}')
    g('v_mov_b32 v88, v22')
    g('s_lshl_b32 s71, s9, 7')
    g(f's_add_u32 s71, s71, {MLIN}')
    g('s_sub_u32 s11, s2, 112')
    g('s_mul_i32 s56, s11, 13108')
    g('s_lshr_b32 s56, s56, 16')
    g('s_mul_i32 s57, s56, 5')
    g('s_sub_u32 s57, s11, s57')
    g('s_lshl_b32 s58, s57, 14')
    g('s_lshl_b32 s11, s56, 6')
    g('s_add_u32 s58, s58, s11')
    g(f's_add_u32 s58, s58, {FIN}')
    g('s_waitcnt lgkmcnt(0)')
    g('s_add_u32 s42, s42, 1')
    g('s_and_b32 s43, s42, 0xff')
    g('v_mov_b32 v92, s43')
    g('s_movk_i32 s60, 0xff00')
    g('s_cmp_eq_u32 s68, 0')
    g('s_cbranch_scc0 L_unit')
    g('s_branch L_bar1a')

    g.label('L_unit')
    g('s_waitcnt vmcnt(23)')
    stamp(1)
    U = 50
    for k in range(10):
        g(f'v_lshlrev_b32 v{U+2*k}, 16, v{XS+k}')
        g(f'v_and_b32 v{U+2*k+1}, 0xffff0000, v{XS+k}')
    g(f'v_pk_add_f32 v[70:71], v[{U}:{U+1}], v[{U+2}:{U+3}]')
    for k in range(2, 10):
        g(f'v_pk_add_f32 v[70:71], v[70:71], v[{U+2*k}:{U+2*k+1}]')
    g('v_add_f32 v70, v70, v71')
    def red_batch(r, t):
        for m in ('row_half_mirror', 'quad_perm:[2,3,0,1]', 'quad_perm:[1,0,3,2]'):
            g('s_nop 1')
            g(f'v_add_f32_dpp v{r}, v{r}, v{r} {m} {DM} bank_mask:0xf')
        rowswaps('v_add_f32', r, t)
    red_batch(70, 71)
    g(f's_mov_b32 s11, 0x{f2u(1.0/640):08x}')
    g('v_mul_f32 v70, s11, v70')
    for k in range(10):
        g(f'v_pk_add_f32 v[{U+2*k}:{U+2*k+1}], v[{U+2*k}:{U+2*k+1}], v[70:71] op_sel_hi:[1,0] neg_lo:[0,1] neg_hi:[0,1]')
    g(f'v_pk_mul_f32 v[72:73], v[{U}:{U+1}], v[{U}:{U+1}]')
    for k in range(1, 10):
        g(f'v_pk_fma_f32 v[72:73], v[{U+2*k}:{U+2*k+1}], v[{U+2*k}:{U+2*k+1}], v[72:73]')
    g('v_add_f32 v72, v72, v73')
    red_batch(72, 73)
    g('v_mul_f32 v72, s11, v72')
    g('v_cvt_pk_bf16_f32 v72, 0, v72')
    g(f'v_add_f32 v72, 0x{f2u(1e-5):08x}, v72')
    g('v_cvt_pk_bf16_f32 v72, 0, v72')
    g('v_sqrt_f32 v72, v72')
    g('v_cvt_pk_bf16_f32 v70, 0, v70')
    g('v_cvt_pk_bf16_f32 v72, 0, v72')
    g('v_rcp_f32 v74, v72')
    g('s_waitcnt vmcnt(20)')
    for k in range(10):
        g(f'v_lshlrev_b32 v{U+2*k}, 16, v{XC+k}')
        g(f'v_and_b32 v{U+2*k+1}, 0xffff0000, v{XC+k}')
    for k in range(10):
        g(f'v_pk_add_f32 v[{U+2*k}:{U+2*k+1}], v[{U+2*k}:{U+2*k+1}], v[70:71] op_sel_hi:[1,0] neg_lo:[0,1] neg_hi:[0,1]')
    for e in range(20):
        g(f'v_cvt_pk_bf16_f32 v{U+e}, 0, v{U+e}')
    for k in range(10):
        p = f'v[{U+2*k}:{U+2*k+1}]'
        g(f'v_pk_mul_f32 v[76:77], {p}, v[74:75] op_sel_hi:[1,0]')
        g(f'v_pk_fma_f32 {p}, v[76:77], v[72:73], {p} op_sel_hi:[1,0,1] neg_lo:[1,0,0] neg_hi:[1,0,0]')
        g(f'v_pk_fma_f32 {p}, {p}, v[74:75], v[76:77] op_sel_hi:[1,0,1]')
    for e in range(20):
        g(f'v_cvt_pk_bf16_f32 v{U+e}, v{U+e}, v{U+e}')
    stamp(2)
    for i in range(20):
        a = 36 + 4*(i & 1)
        for t in range(4):
            g(f'v_and_b32 v{a+t}, v{U+i}, v{6+t}')
        g(f's_waitcnt vmcnt({19-i})')
        g('s_nop 0')
        c_ = '0' if i == 0 else 'v[32:35]'
        g(f'v_mfma_f32_16x16x32_bf16 v[32:35], {vr(a)}, {vr(WB+4*i)}, {c_}')
    g('s_lshl_b32 s13, s64, 3')
    g('s_add_u32 s13, s13, s65')
    g('s_lshl_b32 s13, s13, 10')
    g('s_nop 4')
    tag(32)
    g('buffer_store_dwordx4 v[32:35], v29, s[52:55], s13 offen sc1')
    stamp(3)
    g.label('L_bar1a')
    g('s_barrier')
    g('s_cmp_eq_u32 s10, 0')
    g('s_cbranch_scc0 L_bar1')
    g('v_lshrrev_b32 v36, 5, v0')
    g('v_lshlrev_b32 v36, 10, v36')
    g('v_and_b32 v37, 31, v0')
    g('v_lshl_add_u32 v36, v37, 4, v36')
    g('s_lshl_b32 s13, s6, 13')
    g('s_lshl_b32 s11, s7, 9')
    g('s_add_u32 s13, s13, s11')
    g('s_add_u32 s14, s13, 4096')
    g(f's_mov_b32 s12, {spin}')
    g.label('L_qg')
    for i in range(4):
        g(f'buffer_load_dwordx4 {vr(40+4*i)}, v36, s[52:55], {"s13" if i < 2 else "s14"} offen offset:{2048*(i&1)} sc1')
    g('s_waitcnt vmcnt(0)')
    if diag:
        g(f's_cmp_eq_u32 s12, {spin}')
        g('s_cbranch_scc0 L_qg_ns')
        stamp(13)
        g.label('L_qg_ns')
    untag(40, 16, 37)
    poll_tail('L_qg_ok', 'L_qg', 0)
    if diag:
        g(f's_sub_u32 s92, {spin}, s12')
        g('s_mul_i32 s92, s92, 100')
        g('s_add_u32 s92, s92, s78')
    for r in range(4):
        g(f'v_add_f32 v{40+r}, v{40+r}, v{44+r}')
        g(f'v_add_f32 v{48+r}, v{48+r}, v{52+r}')
    for r in range(4):
        g(f'v_add_f32 v{40+r}, v{40+r}, v{48+r}')
    g(f'ds_write_b128 v23, v[40:43] offset:{L_QP}')
    g('s_waitcnt lgkmcnt(0)')
    g.label('L_bar1')
    stamp(4)
    g('s_barrier')
    if dbgt:
        g('s_memrealtime s[82:83]')
        g('s_waitcnt lgkmcnt(0)')
    stamp(5)
    WOB = 192
    g(f's_mul_i32 s11, s6, {128*1280}')
    g('s_add_u32 s48, s24, s11')
    g('s_addc_u32 s49, s25, 0')
    g(f's_mov_b32 s50, {128*1280}')
    g('s_mov_b32 s51, 0x20000')
    g(f'v_mul_u32_u24 v20, {8*1280}, v3')
    g('v_lshl_add_u32 v20, v4, 4, v20')
    g('v_cmp_gt_u32 vcc, 10, v4')
    g(f's_mul_i32 s11, s10, {32*1280}')
    g('s_mul_i32 s12, s5, 160')
    g('v_cndmask_b32 v20, v22, v20, vcc')
    g('s_add_u32 s11, s11, s12')
    for rg in range(8):
        if rg and rg % 3 == 0:
            g(f's_add_u32 s11, s11, {3*1280}')
        if rg >= WCAP: g(f's_waitcnt vmcnt({WCAP-1})')
        g(f'buffer_load_dwordx4 {vr(WOB+4*rg)}, v20, s[48:51], s11 offen offset:{1280*(rg%3)}{wnt}')
    g('s_cmp_ge_u32 s2, 176')
    g('s_cselect_b32 s11, 1, 0')
    g('s_cmp_eq_u32 s10, 3')
    g('s_cselect_b32 s59, s11, 0')
    g('s_sub_u32 s11, s2, 112')
    g('s_cmp_lt_u32 s11, 135')
    g('s_cselect_b32 s11, 1, 0')
    g('s_cmp_eq_u32 s10, 1')
    g('s_cselect_b32 s13, s11, 0')
    g('s_cmp_eq_u32 s13, 0')
    g('s_cbranch_scc1 L_bark')
    srd(44, 32, 33, 1728*1280)
    srd(48, 30, 31, 3456)
    g(f'v_mul_u32_u24 v20, {16*1280}, v3')
    g('v_lshl_add_u32 v20, v4, 4, v20')
    g(f's_mul_i32 s11, s56, {64*1280}')
    g('s_lshl_b32 s12, s57, 8')
    g('s_add_u32 s11, s11, s12')
    for rg in range(16):
        if rg and rg % 3 == 0:
            g(f's_add_u32 s11, s11, {3*1280}')
        if rg >= 4: g('s_waitcnt vmcnt(3)')
        g(f'buffer_load_dwordx4 {vr(WB+4*rg)}, v20, s[44:47], s11 offen offset:{1280*(rg%3)}{wnt}')
    g('v_lshlrev_b32 v21, 5, v3')
    g('s_lshl_b32 s11, s56, 7')
    g('buffer_load_dwordx4 v[80:83], v21, s[48:51], s11 offen')
    g('buffer_load_dwordx4 v[84:87], v21, s[48:51], s11 offen offset:16')
    g('v_and_b32 v36, 7, v0')
    g('v_lshlrev_b32 v36, 10, v36')
    g('v_lshl_add_u32 v36, v5, 9, v36')
    g('v_lshl_add_u32 v36, v3, 5, v36')
    g('s_lshr_b32 s13, s56, 1')
    g('s_add_u32 s13, s13, 32')
    g('s_lshl_b32 s13, s13, 13')
    g('s_and_b32 s11, s56, 1')
    g('s_lshl_b32 s11, s11, 7')
    g('s_add_u32 s13, s13, s11')
    g(f's_mov_b32 s12, {spin}')
    g.label('L_hg')
    for i in range(4):
        g(f'buffer_load_dwordx4 {vr(48+4*i)}, v36, s[52:55], s13 offen offset:{16*(i>>1) + 256*(i&1)} sc1')
    g('s_waitcnt vmcnt(0)')
    untag(48, 16, 37)
    poll_tail('L_hg_ok', 'L_hg', 8)
    for m in ('row_half_mirror', 'quad_perm:[2,3,0,1]', 'quad_perm:[1,0,3,2]'):
        for e in range(16):
            g(f'v_add_f32_dpp v{48+e}, v{48+e}, v{48+e} {m} {DM} bank_mask:0xf')
    for k in range(8):
        g(f'v_lshlrev_b32 v{64+2*k}, 16, v{80+k}')
        g(f'v_and_b32 v{65+2*k}, 0xffff0000, v{80+k}')
    for e in range(16):
        g(f'v_cvt_pk_bf16_f32 v{48+e}, 0, v{48+e}')
        g(f'v_add_f32 v{48+e}, v{48+e}, v{64+e}')
        g(f'v_cvt_pk_bf16_f32 v{48+e}, 0, v{48+e}')
        g(f'v_cmp_lt_f32 vcc, 0, v{48+e}')
        g('s_nop 1')
        g(f'v_cndmask_b32 v{48+e}, 0, v{48+e}, vcc')
        g(f'v_mul_f32 v{48+e}, v{48+e}, v{48+e}')
        g(f'v_cvt_pk_bf16_f32 v{48+e}, v{48+e}, v{48+e}')
    for i in range(16):
        a = 36 + 4*(i & 1)
        for t in range(4):
            g(f'v_and_b32 v{a+t}, v{48+i}, v{6+t}')
        g('s_nop 1')
        c_ = '0' if i == 0 else 'v[32:35]'
        g(f'v_mfma_f32_16x16x32_bf16 v[32:35], {vr(a)}, {vr(WB+4*i)}, {c_}')
    g('s_nop 7')
    g(f'ds_write_b128 v23, v[32:35] offset:{L_YP+1024}')
    g('s_waitcnt lgkmcnt(0)')
    g(f'ds_read_b128 v[32:35], v29 offset:{L_YP+1024}')
    g('s_waitcnt lgkmcnt(0)')
    tag(32)
    g('buffer_store_dwordx4 v[32:35], v25, s[52:55], s58 offen sc1')
    g.label('L_bark')
    stamp(6)
    g('s_barrier')
    g('s_cmp_lg_u32 s59, 0')
    g('s_cbranch_scc1 L_cons')
    g('s_cmp_eq_u32 s10, 2')
    g('s_cbranch_scc1 L_ml')
    g('s_barrier')
    g('s_branch L_bar2')

    g.label('L_ml')
    g('v_and_b32 v21, 3, v0')
    g('v_lshlrev_b32 v21, 3, v21')
    g(f'ds_read_b64 v[30:31], v21 offset:{L_MLW}')
    g('s_waitcnt lgkmcnt(0)')
    def quadred(op, r):
        g('s_nop 1')
        g(f'{op}_dpp v{r}, v{r}, v{r} quad_perm:[2,3,0,1] {DM} bank_mask:0xf')
        g('s_nop 1')
        g(f'{op}_dpp v{r}, v{r}, v{r} quad_perm:[1,0,3,2] {DM} bank_mask:0xf')
    g('v_mov_b32 v32, v30')
    quadred('v_max_f32', 32)
    g('v_sub_f32 v33, v30, v32')
    g('v_exp_f32 v33, v33')
    g('s_nop 0')
    g('v_mul_f32 v33, v33, v31')
    quadred('v_add_f32', 33)
    g('v_mov_b32 v40, v32')
    g('v_mov_b32 v41, s42')
    g('v_mov_b32 v42, v33')
    g('v_mov_b32 v43, s42')
    g('s_lshl_b32 s11, s8, 4')
    g('v_mov_b32 v36, s11')
    g('v_lshlrev_b32 v38, 1, v21')
    g('s_mov_b64 exec, 1')
    g('buffer_store_dwordx4 v[40:43], v36, s[52:55], s71 offen sc1')
    g('s_mov_b64 exec, -1')
    g(f's_mov_b32 s12, {spin}')
    g('s_barrier')
    g.label('L_mlg')
    g('buffer_load_dwordx4 v[44:47], v38, s[52:55], s71 offen sc1')
    g('s_waitcnt vmcnt(0)')
    g('v_xor_b32 v45, s42, v45')
    g('v_xor_b32 v47, s42, v47')
    g('v_or_b32 v36, v45, v47')
    g('v_cmp_ne_u32 vcc, 0, v36')
    poll_tail('L_mlg_ok', 'L_mlg', 16)
    g('v_mov_b32 v34, v44')
    g('v_mov_b32 v35, v46')
    g('v_mov_b32 v32, v34')
    quadred('v_max_f32', 32)
    g('v_sub_f32 v33, v34, v32')
    g('v_exp_f32 v33, v33')
    g('s_nop 0')
    g('v_mul_f32 v33, v33, v35')
    quadred('v_add_f32', 33)
    g('v_sub_f32 v30, v30, v32')
    g('v_exp_f32 v30, v30')
    g('v_rcp_f32 v33, v33')
    g('s_nop 0')
    g('v_mul_f32 v30, v30, v33')
    g('v_lshrrev_b32 v21, 1, v21')
    g(f'ds_write_b32 v21, v30 offset:{L_FAC}')
    g('s_waitcnt lgkmcnt(0)')
    g('s_branch L_bar2')

    g.label('L_cons')
    srd(44, 16, 17, 2560)
    srd(48, 34, 35, 1280)
    g('s_sub_u32 s15, s2, 176')
    g('v_and_b32 v88, 3, v0')
    g('v_lshl_add_u32 v88, v88, 2, v3')
    g('s_lshl_b32 s11, s15, 4')
    g('v_add_u32 v88, s11, v88')
    g('v_lshlrev_b32 v88, 1, v88')
    g('buffer_load_ushort v90, v88, s[44:47], 0 offen')
    g('s_cmp_ge_u32 s15, 40')
    g('s_cselect_b32 s11, 1280, 0')
    g('v_subrev_u32 v36, s11, v88')
    g('buffer_load_ushort v91, v36, s[48:51], 0 offen')
    g('v_cmp_gt_u32 vcc, 44, v0')
    g('s_lshl_b32 s13, s15, 11')
    g(f's_add_u32 s13, s13, {FIN}')
    g('v_cndmask_b32 v36, v22, v29, vcc')
    g('v_cndmask_b32 v38, v92, 0, vcc')
    g(f's_mov_b32 s12, {spin}')
    g.label('L_fg')
    g('buffer_load_dwordx4 v[40:43], v29, s[52:55], s13 offen sc1')
    g('buffer_load_dwordx4 v[44:47], v36, s[52:55], s13 offen offset:1024 sc1')
    g('s_waitcnt vmcnt(0)')
    for r in range(4):
        g(f'v_or_b32 v{44+r}, v{44+r}, v38')
    def chk8(a, t):
        untag(a, 8, t)
    chk8(40, 37)
    poll_tail('L_fg_ok', 'L_fg', 16)
    def red16(a):
        for r in range(4):
            g(f'v_add_f32 v{a+r}, v{a+r}, v{a+4+r}')
        for m in ('row_ror:4', 'row_ror:8'):
            for r in range(4):
                g(f'v_add_f32_dpp v{a+r}, v{a+r}, v{a+r} {m} {DM} bank_mask:0xf')
        g('s_nop 0')
        g(f'v_permlane16_swap_b32 v{a}, v{a+1}')
        g(f'v_permlane16_swap_b32 v{a+2}, v{a+3}')
        g('s_nop 0')
        g(f'v_add_f32 v{a}, v{a}, v{a+1}')
        g(f'v_add_f32 v{a+2}, v{a+2}, v{a+3}')
        g('s_nop 1')
        g(f'v_permlane32_swap_b32 v{a}, v{a+2}')
        g('s_nop 1')
        g(f'v_add_f32 v{a}, v{a}, v{a+2}')
    red16(40)
    g('v_cvt_pk_bf16_f32 v32, 0, v40')
    g('v_lshlrev_b32 v91, 16, v91')
    g('v_lshlrev_b32 v90, 16, v90')
    g('v_add_f32 v32, v32, v91')
    g('v_cvt_pk_bf16_f32 v32, 0, v32')
    g(f'v_mul_f32 v33, 0x{f2u(-log2e):08x}, v32')
    g('v_exp_f32 v33, v33')
    g('s_nop 0')
    g('v_add_f32 v33, 1.0, v33')
    g('v_rcp_f32 v33, v33')
    g('s_nop 0')
    g('v_mul_f32 v32, v32, v33')
    g('v_cvt_pk_bf16_f32 v91, 0, v32')
    g('s_barrier')

    g.label('L_bar2')
    srd(44, 36, 37, 2560)
    g('v_and_b32 v20, 3, v0')
    g('v_lshl_add_u32 v20, v5, 2, v20')
    g('v_lshlrev_b32 v20, 9, v20')
    g('v_lshl_add_u32 v20, v3, 5, v20')
    g('s_lshl_b32 s11, s10, 7')
    g('v_add_u32 v20, s11, v20')
    g('s_lshl_b32 s13, s6, 12')
    g(f's_add_u32 s13, s13, {OIN}')
    g('v_mov_b32 v21, 0')
    g('v_and_b32 v30, 0x1f0, v29')
    g('s_lshl_b32 s11, s10, 10')
    g('v_add_u32 v31, s11, v23')
    g('s_sub_u32 s15, s2, 176')
    g('s_lshl_b32 s15, s15, 11')
    g(f's_add_u32 s15, s15, {YIN}')
    g(f's_mov_b32 s12, {spin}')
    g('s_waitcnt vmcnt(0)')
    stamp(7)
    g('s_barrier')
    if dbgt:
        g('s_memrealtime s[80:81]')
        g('s_waitcnt lgkmcnt(0)')
    stamp(8)
    g('s_cmp_eq_u32 s10, 0')
    g('s_cbranch_scc0 L_og')
    g(f'ds_read_b128 v[64:67], v21 offset:{L_FAC}')
    for u in range(4):
        g(f'ds_read_b128 {vr(48+4*u)}, v30 offset:{L_OP+512*u}')
    g('s_waitcnt lgkmcnt(3)')
    for e in range(4):
        g(f'v_mul_f32 v{48+e}, v64, v{48+e}')
    for u in range(1, 4):
        g(f's_waitcnt lgkmcnt({3-u})')
        for e in range(4):
            g(f'v_fmac_f32 v{48+e}, v{64+u}, v{48+4*u+e}')
    tag(48)
    g('buffer_store_dwordx4 v[48:51], v28, s[52:55], s70 offen sc1')
    g.label('L_og')
    g('buffer_load_dwordx4 v[40:43], v20, s[52:55], s13 offen sc1')
    g('buffer_load_dwordx4 v[44:47], v20, s[52:55], s13 offen offset:16 sc1')
    g('s_waitcnt vmcnt(0)')
    chk8(40, 37)
    poll_tail('L_og_ok', 'L_og', 0)
    stamp(9)
    for m in ('quad_perm:[2,3,0,1]', 'quad_perm:[1,0,3,2]'):
        for e in range(8):
            g(f'v_add_f32_dpp v{40+e}, v{40+e}, v{40+e} {m} {DM} bank_mask:0xf')
    for e in range(8):
        g(f'v_cvt_pk_bf16_f32 v{40+e}, v{40+e}, v{40+e}')
    def buildA(a, rg):
        for t in range(4):
            g(f'v_and_b32 v{a+t}, v{40+rg}, v{6+t}')
    buildA(52, 0)
    for rg in range(8):
        a = 52 + 4*(rg & 1)
        if rg < 7:
            buildA(52 + 4*((rg+1) & 1), rg+1)
        else:
            g('s_nop 0')
        c_ = '0' if rg == 0 else 'v[32:35]'
        g(f'v_mfma_f32_16x16x32_bf16 v[32:35], {vr(a)}, {vr(WOB+4*rg)}, {c_}')
    g('s_nop 7')
    g(f'ds_write_b128 v31, v[32:35] offset:{L_YP}')
    g('s_waitcnt lgkmcnt(0)')
    g('s_barrier')
    g('s_cmp_eq_u32 s10, 3')
    g('s_cbranch_scc0 L_hend')
    for u in range(4):
        g(f'ds_read_b128 {vr(48+4*u)}, v29 offset:{L_YP+1024*u}')
    g('s_waitcnt lgkmcnt(2)')
    for r in range(4):
        g(f'v_add_f32 v{48+r}, v{48+r}, v{52+r}')
    g('s_waitcnt lgkmcnt(0)')
    for r in range(4):
        g(f'v_add_f32 v{56+r}, v{56+r}, v{60+r}')
    for r in range(4):
        g(f'v_add_f32 v{48+r}, v{48+r}, v{56+r}')
    tag(48)
    g('buffer_store_dwordx4 v[48:51], v27, s[52:55], s69 offen sc1')
    stamp(10)
    g('s_cmp_eq_u32 s59, 0')
    g('s_cbranch_scc1 L_hend')
    g(f's_mov_b32 s12, {spin}')
    g.label('L_yg')
    g('buffer_load_dwordx4 v[40:43], v29, s[52:55], s15 offen sc1')
    g('buffer_load_dwordx4 v[44:47], v29, s[52:55], s15 offen offset:1024 sc1')
    g('s_waitcnt vmcnt(0)')
    chk8(40, 37)
    poll_tail('L_yg_ok', 'L_yg', 0)
    red16(40)
    g('v_cvt_pk_bf16_f32 v32, 0, v40')
    g('v_mul_f32 v32, v32, v91')
    g('v_cvt_pk_bf16_f32 v32, 0, v32')
    g('v_add_f32 v32, v32, v90')
    if trip:
        g('s_memrealtime s[76:77]')
        g('s_waitcnt lgkmcnt(0)')
        g('s_sub_u32 s76, s76, s78')
        g(f's_cmp_gt_u32 s76, {trip}')
        g('s_cbranch_scc0 L_notrip')
        g('v_cvt_f32_u32 v32, s76')
        g('v_mul_f32 v32, 0x3c23d70a, v32')
        g.label('L_notrip')
    g('v_cvt_pk_bf16_f32 v32, v32, v32')
    g('buffer_store_short v32, v88, s[44:47], 0 offen')
    g('s_cmp_eq_u32 s2, 176')
    g('s_cbranch_scc0 L_nobump')
    g('v_mov_b32 v33, s42')
    g(f's_mov_b32 s11, {EPOCH}')
    g('s_mov_b64 exec, 1')
    g('buffer_store_dword v33, v21, s[52:55], s11 offen sc1')
    g.label('L_nobump')
    stamp(11)
    g.label('L_hend')
    if dbgt:
        g('s_cmp_eq_u32 s10, 3')
        g('s_cbranch_scc0 L_exit')
        g('s_memrealtime s[76:77]')
        srd(72, 38, 39, 256)
        g('s_waitcnt lgkmcnt(0)')
        g('s_mov_b64 exec, 1')
        g('v_mov_b32 v8, 0')
        g('v_mov_b32 v4, s76')
        g('s_not_b32 s79, s78')
        g('v_mov_b32 v5, s79')
        g('v_mov_b32 v6, s78')
        g('v_mov_b32 v7, s80')
        g('s_not_b32 s79, s80')
        g('v_mov_b32 v9, s79')
        g('v_mov_b32 v10, s82')
        g('s_not_b32 s79, s82')
        g('v_mov_b32 v11, s79')
        g('buffer_atomic_umax v4, v8, s[72:75], 0 offen')
        g('buffer_atomic_umax v5, v8, s[72:75], 0 offen offset:4')
        g('buffer_atomic_umax v6, v8, s[72:75], 0 offen offset:8')
        g('buffer_atomic_umax v7, v8, s[72:75], 0 offen offset:12')
        g('buffer_atomic_umax v9, v8, s[72:75], 0 offen offset:16')
        g('buffer_atomic_umax v10, v8, s[72:75], 0 offen offset:20')
        g('buffer_atomic_umax v11, v8, s[72:75], 0 offen offset:24')
    stamp_flush()
    g.label('L_exit')
    g('s_endpgm')

    out = HEADER
    out += f"; @launch grid=(256,1,1) block=(512,1,1) lds={LDS_SZ}\n"
    out += '.amdgcn_target "amdgcn-amd-amdhsa--gfx950"\n.text\n'
    out += f'.globl {NAME}_kernel\n.p2align 8\n.type {NAME}_kernel,@function\n{NAME}_kernel:\n'
    out += '\n'.join(g.L) + '\n'
    out += f""".section .rodata,"a"
.p2align 6
.amdhsa_kernel {NAME}_kernel
  .amdhsa_next_free_vgpr 256
  .amdhsa_next_free_sgpr 96
  .amdhsa_accum_offset 256
  .amdhsa_group_segment_fixed_size 0
  .amdhsa_kernarg_size 104
  .amdhsa_user_sgpr_count 2
  .amdhsa_user_sgpr_kernarg_segment_ptr 1
  .amdhsa_system_sgpr_workgroup_id_x 1
  .amdhsa_float_denorm_mode_32 3
.end_amdhsa_kernel
"""
    return out

if __name__ == '__main__':
    kw = eval('dict(' + (sys.argv[2] if len(sys.argv) > 2 else '') + ')')
    open(sys.argv[1], 'w').write(gen(**kw))
```

```python
import sys, math, struct
from gen import NAME, HEADER, f2u, G, vr

UIN = 0
UIN_SZ = 46*8*1024
OIN = UIN + UIN_SZ
OIN_SZ = 256*512
YIN = OIN + OIN_SZ
YIN_SZ = 80*2048
FIN = YIN + YIN_SZ
FIN_SZ = 80*2048
MLIN = FIN + FIN_SZ
MLIN_SZ = 64*128
EPOCH = MLIN + MLIN_SZ
WS_USED = EPOCH + 128
STAMP = 4 << 20
BIG = 0x7ffff000

L_QP = 0
L_MLW = 1024
L_FAC = L_MLW + 32
L_OP = L_FAC + 32
L_YP = L_OP + 2048
LDS_SZ = L_YP + 4096

def gen(NS=3, PB=8, VB=6, PCAP=6, WCAP=8, SCAP=6, VCAP=6, VEND=16, VSW=6, rot=1, diag=False, wnt=' nt', mimic=True, hfirst=True, kvmod=' nt',
        spin=1<<17, abl='', UCAP=20, dbgt=False, qspread=True, trip=None):
    R = NS * 16
    if 'x' in abl or 'p' in abl: spin = 0
    g = G()
    DM = 'row_mask:0xf'
    def stamp(idx):
        if diag:
            g(f's_memrealtime s[76:77]')
            g('s_waitcnt lgkmcnt(0)')
            g(f's_mov_b32 s{80+idx}, s76')
    def stamp_flush():
        if diag:
            g('s_lshl_b32 s76, s2, 3')
            g('s_add_u32 s76, s76, s3')
            g('s_lshl_b32 s76, s76, 6')
            g(f's_add_u32 s76, s76, {STAMP}')
            g('s_mov_b64 exec, 1')
            for q in range(4):
                for r in range(4):
                    g(f'v_mov_b32 v{4+r}, s{80+4*q+r}')
                g('v_mov_b32 v8, 0')
                g(f'buffer_store_dwordx4 v[4:7], v8, s[72:75], s76 offen offset:{16*q}')
                g('s_nop 1')
            g('s_waitcnt vmcnt(0)')
    def srd(d, lo, hi, size):
        g(f's_mov_b32 s{d}, s{lo}')
        g(f's_mov_b32 s{d+1}, s{hi}')
        g(f's_mov_b32 s{d+2}, {size}')
        g(f's_mov_b32 s{d+3}, 0x20000')
    def masks():
        g('v_and_b32 v2, 1, v0')
        g('v_lshlrev_b32 v2, 4, v2')
        g('v_mov_b32 v3, 0xffff')
        g('v_lshlrev_b32 v3, v2, v3')
        g('v_bfe_u32 v2, v0, 1, 2')
        for t in range(4):
            g(f'v_cmp_eq_u32 vcc, {t}, v2')
            g('s_nop 1')
            g(f'v_cndmask_b32 v{6+t}, 0, v3, vcc')
    lab = [0]
    def poll_tail(okl, againl, sleep):
        g('s_sub_u32 s12, s12, 1')
        g(f's_cbranch_scc1 {okl}')
        if sleep:
            g(f's_cbranch_vccz {okl}')
            g(f's_sleep {sleep}')
            g(f's_branch {againl}')
        else:
            g(f's_cbranch_vccnz {againl}')
        g.label(okl)

    def tag(a, n=4):
        for r in range(n):
            g(f'v_and_or_b32 v{a+r}, v{a+r}, s60, v92')
    def untag(a, n, t):
        for r in range(n):
            g(f'v_xor_b32 v{a+r}, s43, v{a+r}')
        g(f'v_or3_b32 v{t}, v{a}, v{a+1}, v{a+2}')
        for e in range(3, n-1, 2):
            g(f'v_or3_b32 v{t}, v{t}, v{a+e}, v{a+e+1}')
        g(f'v_or_b32 v{t}, v{t}, v{a+n-1}')
        g(f'v_and_b32 v{t}, 0xff, v{t}')
        g(f'v_cmp_ne_u32 vcc, 0, v{t}')
    g('s_cmp_ge_u32 s2, 256')
    g('s_cbranch_scc1 L_exit')
    if diag or dbgt or trip:
        g('s_memrealtime s[78:79]')
    g('s_load_dwordx16 s[16:31], s[0:1], 0')
    g('s_load_dwordx8 s[32:39], s[0:1], 64')
    g('s_load_dwordx2 s[40:41], s[0:1], 96')
    g('v_lshrrev_b32 v1, 6, v0')
    g('v_and_b32 v0, 63, v0')
    g('v_readfirstlane_b32 s3, v1')
    g('s_and_b32 s4, s2, 7')
    g('s_lshr_b32 s5, s2, 3')
    g('s_lshr_b32 s6, s5, 3')
    g('s_lshl_b32 s7, s4, 2')
    g('s_add_u32 s6, s6, s7')
    g('s_bfe_u32 s7, s5, 0x10002')
    g('s_and_b32 s8, s5, 3')
    g('s_and_b32 s5, s5, 7')
    g('s_lshl_b32 s9, s7, 5')
    g('s_add_u32 s9, s9, s6')
    g('s_and_b32 s10, s3, 3')
    if diag:
        for i in range(16):
            g(f's_mov_b32 s{80+i}, 0')
    g('s_cmp_ge_u32 s3, 4')
    g('s_cbranch_scc%d L_helper' % (0 if hfirst else 1))

    RB = 64
    def slot(k, s): return RB + 4*(16*k + s)
    g('v_lshlrev_b32 v1, 4, v0')
    g('s_lshl_b32 s13, s8, 2')
    g('s_add_u32 s13, s13, s10')
    g('s_lshl_b32 s13, s13, 12')
    if rot:
        g(f's_mul_i32 s14, s9, {rot*65536}')
        g('s_add_u32 s13, s13, s14')
        g('s_and_b32 s13, s13, 0x1fffff')
    g('s_lshl_b32 s11, s9, 21')
    g('s_mov_b32 s46, 0x200000')
    g('s_mov_b32 s47, 0x20000')
    g('s_waitcnt lgkmcnt(0)')
    g('s_add_u32 s44, s18, s11')
    g('s_addc_u32 s45, s19, 0')
    def issue_piece(k, pc, cap, first=10**9, cap2=None):
        for i in range(4):
            r = slot(k, 4*pc+i)
            if first + i >= cap:
                if cap2 is not None:
                    lab[0] += 1
                    g(f's_cbranch_scc1 L_c{lab[0]}')
                    g(f's_waitcnt vmcnt({cap-1})')
                    g.label(f'L_c{lab[0]}')
                    if cap2 < 16: g(f's_waitcnt vmcnt({cap2-1})')
                else:
                    g(f's_waitcnt vmcnt({cap-1})')
            g(f'buffer_load_dwordx4 {vr(r)}, v1, s[44:47], s13 offen offset:{1024*i}{kvmod}')
        g('s_add_u32 s13, s13, 0x10000')
        g('s_and_b32 s13, s13, 0x1fffff')
    issue_piece(0, 0, PCAP, 0)
    g('s_add_u32 s48, s20, s11')
    g('s_addc_u32 s49, s21, 0')
    if diag:
        srd(72, 40, 41, STAMP + (1<<20))
        g('s_mov_b32 s80, s78')
    masks()
    g(f's_mov_b32 s14, {NS}')
    g('s_mov_b32 s50, 0xcccccccc')
    g('s_mov_b32 s51, 0xcccccccc')
    g('s_mov_b32 s52, 0xaaaaaaaa')
    g('s_mov_b32 s53, 0xaaaaaaaa')
    g('v_and_b32 v28, 15, v0')
    g('v_lshlrev_b32 v28, 5, v28')
    for k in range(NS):
        for pc in range(4):
            if k or pc:
                issue_piece(k, pc, PCAP, 16*k+4*pc)
                if diag:
                    g('s_memrealtime s[76:77]')
                    g('s_waitcnt lgkmcnt(0)')
                    g(f'v_writelane_b32 v63, s76, {32+4*k+pc}')
                if 4*k+pc == PB:
                    g('s_barrier')
    stamp(1)
    g('s_barrier')
    stamp(2)
    for u in range(2):
        g(f'ds_read_b128 {vr(32+8*u)}, v28 offset:{L_QP+512*u}')
        g(f'ds_read_b128 {vr(36+8*u)}, v28 offset:{L_QP+512*u+16}')
    g('s_waitcnt lgkmcnt(0)')
    for e in range(8):
        g(f'v_add_f32 v{32+e}, v{32+e}, v{40+e}')
    for t in range(4):
        g(f'v_cvt_pk_bf16_f32 v{2+t}, v{32+2*t}, v{33+2*t}')

    def blk_stamp():
        if diag:
            g('s_memrealtime s[76:77]')
            g('s_mov_b32 m0, s14')
            g('s_waitcnt lgkmcnt(0)')
            g('v_writelane_b32 v63, s76, m0')
    def kblock(k):
        blk_stamp()
        g('s_cmp_eq_u32 s14, 8')
        g('s_cselect_b32 s44, s48, s44')
        g('s_cselect_b32 s45, s49, s45')
        g('s_cmp_le_u32 s14, 8')
        g('s_cselect_b64 vcc, -1, 0')
        g('s_add_u32 s14, s14, 1')
        for pc in range(4):
            for t in range(4):
                for i in range(4):
                    r = slot(k, 4*pc+i) + t
                    if t == 0:
                        g(f'v_dot2_f32_bf16 v{18+i}, v{r}, v2, 0')
                    else:
                        g(f'v_dot2c_f32_bf16 v{18+i}, v{r}, v{2+t}')
            g('s_nop 2')
            g(f'v_add_f32_dpp v22, v18, v18 row_ror:8 {DM} bank_mask:0x3')
            g(f'v_add_f32_dpp v23, v20, v20 row_ror:8 {DM} bank_mask:0x3')
            g(f'v_add_f32_dpp v22, v19, v19 row_ror:8 {DM} bank_mask:0xc')
            g(f'v_add_f32_dpp v23, v21, v21 row_ror:8 {DM} bank_mask:0xc')
            g('s_nop 0')
            g(f'v_add_f32_dpp v{24+pc}, v22, v22 row_shl:4 {DM} bank_mask:0x5')
            g(f'v_add_f32_dpp v{24+pc}, v23, v23 row_shr:4 {DM} bank_mask:0xa')
            g(f's_cbranch_vccz L_kni{k}_{pc}')
            issue_piece(k, pc, SCAP)
            g.label(f'L_kni{k}_{pc}')
        for e in range(7):
            g(f'v_mov_b32 v{10+e}, v{11+e}')
        for pc in range(4):
            g(f'v_add_f32_dpp v{24+pc}, v{24+pc}, v{24+pc} quad_perm:[2,3,0,1] {DM} bank_mask:0xf')
        g('v_cndmask_b32 v24, v24, v25, s[50:51]')
        g('v_cndmask_b32 v26, v26, v27, s[50:51]')
        g('s_nop 0')
        g(f'v_add_f32_dpp v24, v24, v24 quad_perm:[1,0,3,2] {DM} bank_mask:0xf')
        g(f'v_add_f32_dpp v26, v26, v26 quad_perm:[1,0,3,2] {DM} bank_mask:0xf')
        g('v_cndmask_b32 v17, v24, v26, s[52:53]')
    def pi(pc, i): return 8*(i & 1) + 4*(i >> 1) + 2*(pc & 1) + (pc >> 1)
    def vblock(k):
        blk_stamp()
        g(f's_cmp_lt_u32 s14, {15+NS}')
        g('s_cselect_b64 vcc, -1, 0')
        g('s_add_u32 s14, s14, 1')
        for pc in range(4):
            for i in range(4):
                for t in range(4):
                    g(f'v_and_b32_dpp v{36+4*i+t}, v10, v{6+t} row_newbcast:{pi(pc,i)} {DM} bank_mask:0xf')
            g('s_waitcnt vmcnt(12)')
            if pc:
                g(f's_cbranch_vccnz L_vgo{pc}')
                g(f's_waitcnt vmcnt({12-4*pc})')
                g.label(f'L_vgo{pc}')
            else:
                g('s_nop 0')
            for i in range(4):
                r = slot(k, 4*pc+i)
                g(f'v_mfma_f32_16x16x32_bf16 v[32:35], {vr(36+4*i)}, {vr(r)}, v[32:35]')
            g(f's_cbranch_vccz L_vni{pc}')
            if VEND != VCAP:
                g(f's_cmp_gt_u32 s14, {8+NS+VSW}')
                issue_piece(k, pc, VCAP, cap2=VEND)
            else:
                issue_piece(k, pc, VCAP)
            g.label(f'L_vni{pc}')
        for e in range(7):
            g(f'v_mov_b32 v{10+e}, v{11+e}')

    g.label('L_kloop')
    for k in range(NS):
        kblock(k)
        if k == (7 % NS):
            g(f's_cmp_eq_u32 s14, {8+NS}')
            if k == NS-1:
                g('s_cbranch_scc0 L_kloop')
            else:
                g('s_cbranch_scc1 L_soft')
    if (7 % NS) != NS-1:
        g('s_branch L_kloop')
    g.label('L_soft')
    stamp(3)
    scale = 128 ** -0.5
    log2e = math.log2(math.e)
    if mimic:
        g(f's_mov_b32 s54, 0x{f2u(scale):08x}')
        g(f's_mov_b32 s55, 0x{f2u(log2e):08x}')
        for e in range(8):
            g(f'v_cvt_pk_bf16_f32 v{10+e}, 0, v{10+e}')
        for e in range(8):
            g(f'v_mul_f32 v{10+e}, s54, v{10+e}')
        for e in range(8):
            g(f'v_cvt_pk_bf16_f32 v{10+e}, 0, v{10+e}')
        for e in range(8):
            g(f'v_mul_f32 v{10+e}, s55, v{10+e}')
    else:
        g(f's_mov_b32 s55, 0x{f2u(scale*log2e):08x}')
        for e in range(8):
            g(f'v_mul_f32 v{10+e}, s55, v{10+e}')
    def rowswaps(op, r, t):
        for sw in ('v_permlane16_swap_b32', 'v_permlane32_swap_b32'):
            g(f'v_mov_b32 v{t}, v{r}')
            g('s_nop 1')
            g(f'{sw} v{r}, v{t}')
            g('s_nop 1')
            g(f'{op} v{r}, v{r}, v{t}')
    def allreduce(op, r, t):
        g('s_nop 1')
        for m in ('row_ror:8', 'row_ror:4', 'row_ror:2', 'row_ror:1'):
            g(f'{op}_dpp v{r}, v{r}, v{r} {m} {DM} bank_mask:0xf')
            g('s_nop 1')
        rowswaps(op, r, t)
    g('v_max3_f32 v18, v10, v11, v12')
    g('v_max3_f32 v19, v13, v14, v15')
    g('v_max3_f32 v18, v18, v16, v17')
    g('v_max_f32 v18, v18, v19')
    allreduce('v_max_f32', 18, 20)
    for e in range(8):
        g(f'v_sub_f32 v{10+e}, v{10+e}, v18')
    for e in range(8):
        g(f'v_exp_f32 v{10+e}, v{10+e}')
    g('s_nop 0')
    g('v_add_f32 v19, v10, v11')
    g('v_add_f32 v20, v12, v13')
    g('v_add_f32 v21, v14, v15')
    g('v_add_f32 v22, v16, v17')
    g('v_add_f32 v19, v19, v20')
    g('v_add_f32 v21, v21, v22')
    g('v_add_f32 v19, v19, v21')
    allreduce('v_add_f32', 19, 20)
    for e in range(8):
        g(f'v_cvt_pk_bf16_f32 v{10+e}, v{10+e}, v{10+e}')
    g('s_lshl_b32 s15, s10, 3')
    g('v_mov_b32 v20, s15')
    g(f'ds_write_b64 v20, v[18:19] offset:{L_MLW}')
    for r in range(4):
        g(f'v_mov_b32 v{32+r}, 0')
    g('v_and_b32 v29, 16, v0')
    g('v_add_u32 v28, v28, v29')
    g('s_lshl_b32 s15, s10, 9')
    g('v_add_u32 v28, s15, v28')
    g('s_waitcnt lgkmcnt(0)')
    g('s_barrier')
    g.label('L_vloop')
    g(f's_cmp_eq_u32 s14, {8+NS+VB}')
    g('s_cbranch_scc0 L_vnb')
    g('s_barrier')
    g.label('L_vnb')
    vblock(8 % NS)
    g('s_cbranch_vccnz L_vloop')
    g(f'ds_write_b128 v28, v[32:35] offset:{L_OP}')
    g('s_waitcnt lgkmcnt(0)')
    stamp(4)
    g('s_barrier')
    if diag:
        g('s_lshl_b32 s76, s2, 3')
        g('s_add_u32 s76, s76, s3')
        g('s_lshl_b32 s76, s76, 8')
        g(f's_add_u32 s76, s76, {STAMP + (1<<18)}')
        g('v_lshlrev_b32 v8, 2, v0')
        g('buffer_store_dword v63, v8, s[72:75], s76 offen')
    stamp_flush()
    g('s_endpgm')

    g.label('L_helper')
    g('v_lshrrev_b32 v3, 4, v0')
    g('v_and_b32 v4, 15, v0')
    g('v_bfe_u32 v5, v0, 3, 1')
    g('s_lshr_b32 s13, s2, 3')
    g('s_add_u32 s14, s13, 32')
    g('s_cmp_eq_u32 s10, 0')
    g('s_cselect_b32 s64, %s, s14' % ('s13' if qspread else 's6'))
    g('s_cselect_b32 s65, %s, s4' % ('s4' if qspread else 's5'))
    g('s_movk_i32 s14, 3456')
    g('s_cselect_b32 s66, 0x2000, s14')
    g('s_cselect_b32 s67, %s, s13' % ('s13' if qspread else 's6'))
    g('s_lshl_b32 s67, s67, 8')
    g('s_cmp_lt_u32 s2, 112')
    g('s_cselect_b32 s68, 2, 1')
    g('s_cmp_lt_u32 s10, s68')
    g('s_cselect_b32 s68, 1, 0')
    g('v_and_b32 v1, 7, v0')
    g('v_lshl_add_u32 v1, v3, 3, v1')
    g('v_mul_u32_u24 v1, 40, v1')
    g('v_mul_u32_u24 v20, 1280, v5')
    g('v_add_u32 v1, v1, v20')
    g('s_lshl_b32 s11, s65, 2')
    g('v_add_u32 v2, s11, v3')
    g('v_mul_u32_u24 v2, 40, v2')
    g('v_add_u32 v2, v2, v20')
    g('s_mul_i32 s11, s66, 20')
    g('v_mul_u32_u24 v21, s11, v3')
    g('v_lshl_add_u32 v21, v4, 4, v21')
    g('s_cmp_eq_u32 s64, 45')
    g('s_cselect_b32 s11, 8, 16')
    g('v_cmp_gt_u32 vcc, s11, v4')
    g(f'v_mov_b32 v22, 0x{BIG:x}')
    g('s_mul_i32 s12, s65, 80')
    g('v_cndmask_b32 v21, v22, v21, vcc')
    g('s_mul_i32 s12, s12, s66')
    g('s_add_u32 s12, s12, s67')
    g('s_mul_i32 s50, s66, 640')
    g('s_mov_b32 s51, 0x20000')
    g('s_movk_i32 s46, 2560')
    g('s_mov_b32 s47, 0x20000')
    g('s_cmp_eq_u32 s10, 0')
    g('s_waitcnt lgkmcnt(0)')
    g(f's_load_dword s42, s[40:41], {EPOCH}')
    g('s_mov_b32 s44, s16')
    g('s_mov_b32 s45, s17')
    g('s_cselect_b32 s48, s22, s28')
    g('s_cselect_b32 s49, s23, s29')
    if diag:
        srd(72, 40, 41, STAMP + (1<<20))
        g('s_mov_b32 s80, s78')
    if 'h' in abl:
        stamp_flush()
        g('s_endpgm')
    if 'w' in abl: g('s_mov_b32 s50, 0')
    g('s_cmp_eq_u32 s68, 0')
    g('s_cbranch_scc1 L_noload')
    XS, XC, WB = 30, 40, 96
    for base, vo in ((XS, 'v1'), (XC, 'v2')):
        g(f'buffer_load_dwordx4 {vr(base)}, {vo}, s[44:47], 0 offen')
        g(f'buffer_load_dwordx4 {vr(base+4)}, {vo}, s[44:47], 0 offen offset:16')
        g(f'buffer_load_dwordx2 {vr(base+8,2)}, {vo}, s[44:47], 0 offen offset:32')
    for i in range(20):
        g(f'buffer_load_dwordx4 {vr(WB+4*i)}, v21, s[48:51], s12 offen{wnt}')
        if i < 19: g('s_add_u32 s12, s12, s66')
    g.label('L_noload')
    srd(52, 40, 41, WS_USED)
    masks()
    g('v_lshrrev_b32 v3, 4, v0')
    g('v_lshrrev_b32 v23, 5, v0')
    g('v_lshlrev_b32 v23, 9, v23')
    g('v_lshl_add_u32 v23, v4, 5, v23')
    g('v_and_b32 v24, 16, v0')
    g('v_add_u32 v23, v23, v24')
    g('v_lshrrev_b32 v25, 5, v0')
    g('v_mul_u32_u24 v25, 40, v25')
    g('v_bfe_u32 v26, v0, 2, 3')
    g('v_add_u32 v25, v25, v26')
    g('v_lshlrev_b32 v25, 11, v25')
    g('v_and_b32 v26, 3, v0')
    g('v_lshl_add_u32 v25, v26, 4, v25')
    g('v_and_b32 v26, 31, v0')
    g('v_cmp_gt_u32 vcc, 20, v26')
    g(f'v_mov_b32 v22, 0x{BIG:x}')
    g(f's_mul_i32 s69, s5, {5*2048}')
    g('v_cndmask_b32 v27, v22, v25, vcc')
    g('s_lshl_b32 s11, s6, 6')
    g('s_add_u32 s69, s69, s11')
    g(f's_add_u32 s69, s69, {YIN}')
    g('v_cmp_gt_u32 vcc, 32, v0')
    g('v_lshlrev_b32 v29, 4, v0')
    g('s_lshl_b32 s70, s6, 3')
    g('v_cndmask_b32 v28, v22, v29, vcc')
    g('s_add_u32 s70, s70, s5')
    g('s_lshl_b32 s70, s70, 9')
    g(f's_add_u32 s70, s70, {OIN}')
    g('v_mov_b32 v88, v22')
    g('s_lshl_b32 s71, s9, 7')
    g(f's_add_u32 s71, s71, {MLIN}')
    g('s_sub_u32 s11, s2, 112')
    g('s_mul_i32 s56, s11, 13108')
    g('s_lshr_b32 s56, s56, 16')
    g('s_mul_i32 s57, s56, 5')
    g('s_sub_u32 s57, s11, s57')
    g('s_lshl_b32 s58, s57, 14')
    g('s_lshl_b32 s11, s56, 6')
    g('s_add_u32 s58, s58, s11')
    g(f's_add_u32 s58, s58, {FIN}')
    g('s_waitcnt lgkmcnt(0)')
    g('s_add_u32 s42, s42, 1')
    g('s_and_b32 s43, s42, 0xff')
    g('v_mov_b32 v92, s43')
    g('s_movk_i32 s60, 0xff00')
    g('s_cmp_eq_u32 s68, 0')
    g('s_cbranch_scc0 L_unit')
    g('s_branch L_bar1a')

    g.label('L_unit')
    g('s_waitcnt vmcnt(23)')
    stamp(1)
    U = 50
    for k in range(10):
        g(f'v_lshlrev_b32 v{U+2*k}, 16, v{XS+k}')
        g(f'v_and_b32 v{U+2*k+1}, 0xffff0000, v{XS+k}')
    g(f'v_pk_add_f32 v[70:71], v[{U}:{U+1}], v[{U+2}:{U+3}]')
    for k in range(2, 10):
        g(f'v_pk_add_f32 v[70:71], v[70:71], v[{U+2*k}:{U+2*k+1}]')
    g('v_add_f32 v70, v70, v71')
    def red_batch(r, t):
        for m in ('row_half_mirror', 'quad_perm:[2,3,0,1]', 'quad_perm:[1,0,3,2]'):
            g('s_nop 1')
            g(f'v_add_f32_dpp v{r}, v{r}, v{r} {m} {DM} bank_mask:0xf')
        rowswaps('v_add_f32', r, t)
    red_batch(70, 71)
    g(f's_mov_b32 s11, 0x{f2u(1.0/640):08x}')
    g('v_mul_f32 v70, s11, v70')
    for k in range(10):
        g(f'v_pk_add_f32 v[{U+2*k}:{U+2*k+1}], v[{U+2*k}:{U+2*k+1}], v[70:71] op_sel_hi:[1,0] neg_lo:[0,1] neg_hi:[0,1]')
    g(f'v_pk_mul_f32 v[72:73], v[{U}:{U+1}], v[{U}:{U+1}]')
    for k in range(1, 10):
        g(f'v_pk_fma_f32 v[72:73], v[{U+2*k}:{U+2*k+1}], v[{U+2*k}:{U+2*k+1}], v[72:73]')
    g('v_add_f32 v72, v72, v73')
    red_batch(72, 73)
    g('v_mul_f32 v72, s11, v72')
    g('v_cvt_pk_bf16_f32 v72, 0, v72')
    g(f'v_add_f32 v72, 0x{f2u(1e-5):08x}, v72')
    g('v_cvt_pk_bf16_f32 v72, 0, v72')
    g('v_sqrt_f32 v72, v72')
    g('v_cvt_pk_bf16_f32 v70, 0, v70')
    g('v_cvt_pk_bf16_f32 v72, 0, v72')
    g('v_rcp_f32 v74, v72')
    g('s_waitcnt vmcnt(20)')
    for k in range(10):
        g(f'v_lshlrev_b32 v{U+2*k}, 16, v{XC+k}')
        g(f'v_and_b32 v{U+2*k+1}, 0xffff0000, v{XC+k}')
    for k in range(10):
        g(f'v_pk_add_f32 v[{U+2*k}:{U+2*k+1}], v[{U+2*k}:{U+2*k+1}], v[70:71] op_sel_hi:[1,0] neg_lo:[0,1] neg_hi:[0,1]')
    for e in range(20):
        g(f'v_cvt_pk_bf16_f32 v{U+e}, 0, v{U+e}')
    for k in range(10):
        p = f'v[{U+2*k}:{U+2*k+1}]'
        g(f'v_pk_mul_f32 v[76:77], {p}, v[74:75] op_sel_hi:[1,0]')
        g(f'v_pk_fma_f32 {p}, v[76:77], v[72:73], {p} op_sel_hi:[1,0,1] neg_lo:[1,0,0] neg_hi:[1,0,0]')
        g(f'v_pk_fma_f32 {p}, {p}, v[74:75], v[76:77] op_sel_hi:[1,0,1]')
    for e in range(20):
        g(f'v_cvt_pk_bf16_f32 v{U+e}, v{U+e}, v{U+e}')
    stamp(2)
    for i in range(20):
        a = 36 + 4*(i & 1)
        for t in range(4):
            g(f'v_and_b32 v{a+t}, v{U+i}, v{6+t}')
        g(f's_waitcnt vmcnt({19-i})')
        g('s_nop 0')
        c_ = '0' if i == 0 else 'v[32:35]'
        g(f'v_mfma_f32_16x16x32_bf16 v[32:35], {vr(a)}, {vr(WB+4*i)}, {c_}')
    g('s_lshl_b32 s13, s64, 3')
    g('s_add_u32 s13, s13, s65')
    g('s_lshl_b32 s13, s13, 10')
    g('s_nop 4')
    tag(32)
    g('buffer_store_dwordx4 v[32:35], v29, s[52:55], s13 offen sc1')
    stamp(3)
    g.label('L_bar1a')
    g('s_barrier')
    g('s_cmp_eq_u32 s10, 0')
    g('s_cbranch_scc0 L_bar1')
    g('v_lshrrev_b32 v36, 5, v0')
    g('v_lshlrev_b32 v36, 10, v36')
    g('v_and_b32 v37, 31, v0')
    g('v_lshl_add_u32 v36, v37, 4, v36')
    g('s_lshl_b32 s13, s6, 13')
    g('s_lshl_b32 s11, s7, 9')
    g('s_add_u32 s13, s13, s11')
    g('s_add_u32 s14, s13, 4096')
    g(f's_mov_b32 s12, {spin}')
    g.label('L_qg')
    for i in range(4):
        g(f'buffer_load_dwordx4 {vr(40+4*i)}, v36, s[52:55], {"s13" if i < 2 else "s14"} offen offset:{2048*(i&1)} sc1')
    g('s_waitcnt vmcnt(0)')
    if diag:
        g(f's_cmp_eq_u32 s12, {spin}')
        g('s_cbranch_scc0 L_qg_ns')
        stamp(13)
        g.label('L_qg_ns')
    untag(40, 16, 37)
    poll_tail('L_qg_ok', 'L_qg', 0)
    if diag:
        g(f's_sub_u32 s92, {spin}, s12')
        g('s_mul_i32 s92, s92, 100')
        g('s_add_u32 s92, s92, s78')
    for r in range(4):
        g(f'v_add_f32 v{40+r}, v{40+r}, v{44+r}')
        g(f'v_add_f32 v{48+r}, v{48+r}, v{52+r}')
    for r in range(4):
        g(f'v_add_f32 v{40+r}, v{40+r}, v{48+r}')
    g(f'ds_write_b128 v23, v[40:43] offset:{L_QP}')
    g('s_waitcnt lgkmcnt(0)')
    g.label('L_bar1')
    stamp(4)
    g('s_barrier')
    if dbgt:
        g('s_memrealtime s[82:83]')
        g('s_waitcnt lgkmcnt(0)')
    stamp(5)
    WOB = 192
    g(f's_mul_i32 s11, s6, {128*1280}')
    g('s_add_u32 s48, s24, s11')
    g('s_addc_u32 s49, s25, 0')
    g(f's_mov_b32 s50, {128*1280}')
    g('s_mov_b32 s51, 0x20000')
    g(f'v_mul_u32_u24 v20, {8*1280}, v3')
    g('v_lshl_add_u32 v20, v4, 4, v20')
    g('v_cmp_gt_u32 vcc, 10, v4')
    g(f's_mul_i32 s11, s10, {32*1280}')
    g('s_mul_i32 s12, s5, 160')
    g('v_cndmask_b32 v20, v22, v20, vcc')
    g('s_add_u32 s11, s11, s12')
    for rg in range(8):
        if rg and rg % 3 == 0:
            g(f's_add_u32 s11, s11, {3*1280}')
        if rg >= WCAP: g(f's_waitcnt vmcnt({WCAP-1})')
        g(f'buffer_load_dwordx4 {vr(WOB+4*rg)}, v20, s[48:51], s11 offen offset:{1280*(rg%3)}{wnt}')
    g('s_cmp_ge_u32 s2, 176')
    g('s_cselect_b32 s11, 1, 0')
    g('s_cmp_eq_u32 s10, 3')
    g('s_cselect_b32 s59, s11, 0')
    g('s_sub_u32 s11, s2, 112')
    g('s_cmp_lt_u32 s11, 135')
    g('s_cselect_b32 s11, 1, 0')
    g('s_cmp_eq_u32 s10, 1')
    g('s_cselect_b32 s13, s11, 0')
    g('s_cmp_eq_u32 s13, 0')
    g('s_cbranch_scc1 L_bark')
    srd(44, 32, 33, 1728*1280)
    srd(48, 30, 31, 3456)
    g(f'v_mul_u32_u24 v20, {16*1280}, v3')
    g('v_lshl_add_u32 v20, v4, 4, v20')
    g(f's_mul_i32 s11, s56, {64*1280}')
    g('s_lshl_b32 s12, s57, 8')
    g('s_add_u32 s11, s11, s12')
    for rg in range(16):
        if rg and rg % 3 == 0:
            g(f's_add_u32 s11, s11, {3*1280}')
        if rg >= 4: g('s_waitcnt vmcnt(3)')
        g(f'buffer_load_dwordx4 {vr(WB+4*rg)}, v20, s[44:47], s11 offen offset:{1280*(rg%3)}{wnt}')
    g('v_lshlrev_b32 v21, 5, v3')
    g('s_lshl_b32 s11, s56, 7')
    g('buffer_load_dwordx4 v[80:83], v21, s[48:51], s11 offen')
    g('buffer_load_dwordx4 v[84:87], v21, s[48:51], s11 offen offset:16')
    g('v_and_b32 v36, 7, v0')
    g('v_lshlrev_b32 v36, 10, v36')
    g('v_lshl_add_u32 v36, v5, 9, v36')
    g('v_lshl_add_u32 v36, v3, 5, v36')
    g('s_lshr_b32 s13, s56, 1')
    g('s_add_u32 s13, s13, 32')
    g('s_lshl_b32 s13, s13, 13')
    g('s_and_b32 s11, s56, 1')
    g('s_lshl_b32 s11, s11, 7')
    g('s_add_u32 s13, s13, s11')
    g(f's_mov_b32 s12, {spin}')
    g.label('L_hg')
    for i in range(4):
        g(f'buffer_load_dwordx4 {vr(48+4*i)}, v36, s[52:55], s13 offen offset:{16*(i>>1) + 256*(i&1)} sc1')
    g('s_waitcnt vmcnt(0)')
    untag(48, 16, 37)
    poll_tail('L_hg_ok', 'L_hg', 8)
    for m in ('row_half_mirror', 'quad_perm:[2,3,0,1]', 'quad_perm:[1,0,3,2]'):
        for e in range(16):
            g(f'v_add_f32_dpp v{48+e}, v{48+e}, v{48+e} {m} {DM} bank_mask:0xf')
    for k in range(8):
        g(f'v_lshlrev_b32 v{64+2*k}, 16, v{80+k}')
        g(f'v_and_b32 v{65+2*k}, 0xffff0000, v{80+k}')
    for e in range(16):
        g(f'v_cvt_pk_bf16_f32 v{48+e}, 0, v{48+e}')
        g(f'v_add_f32 v{48+e}, v{48+e}, v{64+e}')
        g(f'v_cvt_pk_bf16_f32 v{48+e}, 0, v{48+e}')
        g(f'v_cmp_lt_f32 vcc, 0, v{48+e}')
        g('s_nop 1')
        g(f'v_cndmask_b32 v{48+e}, 0, v{48+e}, vcc')
        g(f'v_mul_f32 v{48+e}, v{48+e}, v{48+e}')
        g(f'v_cvt_pk_bf16_f32 v{48+e}, v{48+e}, v{48+e}')
    for i in range(16):
        a = 36 + 4*(i & 1)
        for t in range(4):
            g(f'v_and_b32 v{a+t}, v{48+i}, v{6+t}')
        g('s_nop 1')
        c_ = '0' if i == 0 else 'v[32:35]'
        g(f'v_mfma_f32_16x16x32_bf16 v[32:35], {vr(a)}, {vr(WB+4*i)}, {c_}')
    g('s_nop 7')
    g(f'ds_write_b128 v23, v[32:35] offset:{L_YP+1024}')
    g('s_waitcnt lgkmcnt(0)')
    g(f'ds_read_b128 v[32:35], v29 offset:{L_YP+1024}')
    g('s_waitcnt lgkmcnt(0)')
    tag(32)
    g('buffer_store_dwordx4 v[32:35], v25, s[52:55], s58 offen sc1')
    g.label('L_bark')
    stamp(6)
    g('s_barrier')
    g('s_cmp_lg_u32 s59, 0')
    g('s_cbranch_scc1 L_cons')
    g('s_cmp_eq_u32 s10, 2')
    g('s_cbranch_scc1 L_ml')
    g('s_barrier')
    g('s_branch L_bar2')

    g.label('L_ml')
    g('v_and_b32 v21, 3, v0')
    g('v_lshlrev_b32 v21, 3, v21')
    g(f'ds_read_b64 v[30:31], v21 offset:{L_MLW}')
    g('s_waitcnt lgkmcnt(0)')
    def quadred(op, r):
        g('s_nop 1')
        g(f'{op}_dpp v{r}, v{r}, v{r} quad_perm:[2,3,0,1] {DM} bank_mask:0xf')
        g('s_nop 1')
        g(f'{op}_dpp v{r}, v{r}, v{r} quad_perm:[1,0,3,2] {DM} bank_mask:0xf')
    g('v_mov_b32 v32, v30')
    quadred('v_max_f32', 32)
    g('v_sub_f32 v33, v30, v32')
    g('v_exp_f32 v33, v33')
    g('s_nop 0')
    g('v_mul_f32 v33, v33, v31')
    quadred('v_add_f32', 33)
    g('v_mov_b32 v40, v32')
    g('v_mov_b32 v41, s42')
    g('v_mov_b32 v42, v33')
    g('v_mov_b32 v43, s42')
    g('s_lshl_b32 s11, s8, 4')
    g('v_mov_b32 v36, s11')
    g('v_lshlrev_b32 v38, 1, v21')
    g('s_mov_b64 exec, 1')
    g('buffer_store_dwordx4 v[40:43], v36, s[52:55], s71 offen sc1')
    g('s_mov_b64 exec, -1')
    g(f's_mov_b32 s12, {spin}')
    g('s_barrier')
    g.label('L_mlg')
    g('buffer_load_dwordx4 v[44:47], v38, s[52:55], s71 offen sc1')
    g('s_waitcnt vmcnt(0)')
    g('v_xor_b32 v45, s42, v45')
    g('v_xor_b32 v47, s42, v47')
    g('v_or_b32 v36, v45, v47')
    g('v_cmp_ne_u32 vcc, 0, v36')
    poll_tail('L_mlg_ok', 'L_mlg', 16)
    g('v_mov_b32 v34, v44')
    g('v_mov_b32 v35, v46')
    g('v_mov_b32 v32, v34')
    quadred('v_max_f32', 32)
    g('v_sub_f32 v33, v34, v32')
    g('v_exp_f32 v33, v33')
    g('s_nop 0')
    g('v_mul_f32 v33, v33, v35')
    quadred('v_add_f32', 33)
    g('v_sub_f32 v30, v30, v32')
    g('v_exp_f32 v30, v30')
    g('v_rcp_f32 v33, v33')
    g('s_nop 0')
    g('v_mul_f32 v30, v30, v33')
    g('v_lshrrev_b32 v21, 1, v21')
    g(f'ds_write_b32 v21, v30 offset:{L_FAC}')
    g('s_waitcnt lgkmcnt(0)')
    g('s_branch L_bar2')

    g.label('L_cons')
    srd(44, 16, 17, 2560)
    srd(48, 34, 35, 1280)
    g('s_sub_u32 s15, s2, 176')
    g('v_and_b32 v88, 3, v0')
    g('v_lshl_add_u32 v88, v88, 2, v3')
    g('s_lshl_b32 s11, s15, 4')
    g('v_add_u32 v88, s11, v88')
    g('v_lshlrev_b32 v88, 1, v88')
    g('buffer_load_ushort v90, v88, s[44:47], 0 offen')
    g('s_cmp_ge_u32 s15, 40')
    g('s_cselect_b32 s11, 1280, 0')
    g('v_subrev_u32 v36, s11, v88')
    g('buffer_load_ushort v91, v36, s[48:51], 0 offen')
    g('v_cmp_gt_u32 vcc, 44, v0')
    g('s_lshl_b32 s13, s15, 11')
    g(f's_add_u32 s13, s13, {FIN}')
    g('v_cndmask_b32 v36, v22, v29, vcc')
    g('v_cndmask_b32 v38, v92, 0, vcc')
    g(f's_mov_b32 s12, {spin}')
    g.label('L_fg')
    g('buffer_load_dwordx4 v[40:43], v29, s[52:55], s13 offen sc1')
    g('buffer_load_dwordx4 v[44:47], v36, s[52:55], s13 offen offset:1024 sc1')
    g('s_waitcnt vmcnt(0)')
    for r in range(4):
        g(f'v_or_b32 v{44+r}, v{44+r}, v38')
    def chk8(a, t):
        untag(a, 8, t)
    chk8(40, 37)
    poll_tail('L_fg_ok', 'L_fg', 16)
    def red16(a):
        for r in range(4):
            g(f'v_add_f32 v{a+r}, v{a+r}, v{a+4+r}')
        for m in ('row_ror:4', 'row_ror:8'):
            for r in range(4):
                g(f'v_add_f32_dpp v{a+r}, v{a+r}, v{a+r} {m} {DM} bank_mask:0xf')
        g('s_nop 0')
        g(f'v_permlane16_swap_b32 v{a}, v{a+1}')
        g(f'v_permlane16_swap_b32 v{a+2}, v{a+3}')
        g('s_nop 0')
        g(f'v_add_f32 v{a}, v{a}, v{a+1}')
        g(f'v_add_f32 v{a+2}, v{a+2}, v{a+3}')
        g('s_nop 1')
        g(f'v_permlane32_swap_b32 v{a}, v{a+2}')
        g('s_nop 1')
        g(f'v_add_f32 v{a}, v{a}, v{a+2}')
    red16(40)
    g('v_cvt_pk_bf16_f32 v32, 0, v40')
    g('v_lshlrev_b32 v91, 16, v91')
    g('v_lshlrev_b32 v90, 16, v90')
    g('v_add_f32 v32, v32, v91')
    g('v_cvt_pk_bf16_f32 v32, 0, v32')
    g(f'v_mul_f32 v33, 0x{f2u(-log2e):08x}, v32')
    g('v_exp_f32 v33, v33')
    g('s_nop 0')
    g('v_add_f32 v33, 1.0, v33')
    g('v_rcp_f32 v33, v33')
    g('s_nop 0')
    g('v_mul_f32 v32, v32, v33')
    g('v_cvt_pk_bf16_f32 v91, 0, v32')
    g('s_barrier')

    g.label('L_bar2')
    srd(44, 36, 37, 2560)
    g('v_and_b32 v20, 3, v0')
    g('v_lshl_add_u32 v20, v5, 2, v20')
    g('v_lshlrev_b32 v20, 9, v20')
    g('v_lshl_add_u32 v20, v3, 5, v20')
    g('s_lshl_b32 s11, s10, 7')
    g('v_add_u32 v20, s11, v20')
    g('s_lshl_b32 s13, s6, 12')
    g(f's_add_u32 s13, s13, {OIN}')
    g('v_mov_b32 v21, 0')
    g('v_and_b32 v30, 0x1f0, v29')
    g('s_lshl_b32 s11, s10, 10')
    g('v_add_u32 v31, s11, v23')
    g('s_sub_u32 s15, s2, 176')
    g('s_lshl_b32 s15, s15, 11')
    g(f's_add_u32 s15, s15, {YIN}')
    g(f's_mov_b32 s12, {spin}')
    g('s_waitcnt vmcnt(0)')
    stamp(7)
    g('s_barrier')
    if dbgt:
        g('s_memrealtime s[80:81]')
        g('s_waitcnt lgkmcnt(0)')
    stamp(8)
    g('s_cmp_eq_u32 s10, 0')
    g('s_cbranch_scc0 L_og')
    g(f'ds_read_b128 v[64:67], v21 offset:{L_FAC}')
    for u in range(4):
        g(f'ds_read_b128 {vr(48+4*u)}, v30 offset:{L_OP+512*u}')
    g('s_waitcnt lgkmcnt(3)')
    for e in range(4):
        g(f'v_mul_f32 v{48+e}, v64, v{48+e}')
    for u in range(1, 4):
        g(f's_waitcnt lgkmcnt({3-u})')
        for e in range(4):
            g(f'v_fmac_f32 v{48+e}, v{64+u}, v{48+4*u+e}')
    tag(48)
    g('buffer_store_dwordx4 v[48:51], v28, s[52:55], s70 offen sc1')
    g.label('L_og')
    g('buffer_load_dwordx4 v[40:43], v20, s[52:55], s13 offen sc1')
    g('buffer_load_dwordx4 v[44:47], v20, s[52:55], s13 offen offset:16 sc1')
    g('s_waitcnt vmcnt(0)')
    chk8(40, 37)
    poll_tail('L_og_ok', 'L_og', 0)
    stamp(9)
    for m in ('quad_perm:[2,3,0,1]', 'quad_perm:[1,0,3,2]'):
        for e in range(8):
            g(f'v_add_f32_dpp v{40+e}, v{40+e}, v{40+e} {m} {DM} bank_mask:0xf')
    for e in range(8):
        g(f'v_cvt_pk_bf16_f32 v{40+e}, v{40+e}, v{40+e}')
    def buildA(a, rg):
        for t in range(4):
            g(f'v_and_b32 v{a+t}, v{40+rg}, v{6+t}')
    buildA(52, 0)
    for rg in range(8):
        a = 52 + 4*(rg & 1)
        if rg < 7:
            buildA(52 + 4*((rg+1) & 1), rg+1)
        else:
            g('s_nop 0')
        c_ = '0' if rg == 0 else 'v[32:35]'
        g(f'v_mfma_f32_16x16x32_bf16 v[32:35], {vr(a)}, {vr(WOB+4*rg)}, {c_}')
    g('s_nop 7')
    g(f'ds_write_b128 v31, v[32:35] offset:{L_YP}')
    g('s_waitcnt lgkmcnt(0)')
    g('s_barrier')
    g('s_cmp_eq_u32 s10, 3')
    g('s_cbranch_scc0 L_hend')
    for u in range(4):
        g(f'ds_read_b128 {vr(48+4*u)}, v29 offset:{L_YP+1024*u}')
    g('s_waitcnt lgkmcnt(2)')
    for r in range(4):
        g(f'v_add_f32 v{48+r}, v{48+r}, v{52+r}')
    g('s_waitcnt lgkmcnt(0)')
    for r in range(4):
        g(f'v_add_f32 v{56+r}, v{56+r}, v{60+r}')
    for r in range(4):
        g(f'v_add_f32 v{48+r}, v{48+r}, v{56+r}')
    tag(48)
    g('buffer_store_dwordx4 v[48:51], v27, s[52:55], s69 offen sc1')
    stamp(10)
    g('s_cmp_eq_u32 s59, 0')
    g('s_cbranch_scc1 L_hend')
    g(f's_mov_b32 s12, {spin}')
    g.label('L_yg')
    g('buffer_load_dwordx4 v[40:43], v29, s[52:55], s15 offen sc1')
    g('buffer_load_dwordx4 v[44:47], v29, s[52:55], s15 offen offset:1024 sc1')
    g('s_waitcnt vmcnt(0)')
    chk8(40, 37)
    poll_tail('L_yg_ok', 'L_yg', 0)
    red16(40)
    g('v_cvt_pk_bf16_f32 v32, 0, v40')
    g('v_mul_f32 v32, v32, v91')
    g('v_cvt_pk_bf16_f32 v32, 0, v32')
    g('v_add_f32 v32, v32, v90')
    if trip:
        g('s_memrealtime s[76:77]')
        g('s_waitcnt lgkmcnt(0)')
        g('s_sub_u32 s76, s76, s78')
        g(f's_cmp_gt_u32 s76, {trip[0]}')
        g('s_cbranch_scc0 L_notrip')
        g(f's_cmp_lt_u32 s76, {trip[1]}')
        g('s_cbranch_scc0 L_notrip')
        g('s_cmp_eq_u32 s2, %d' % trip[2])
        g('s_cbranch_scc0 L_notrip')
        g('s_getreg_b32 s77, hwreg(HW_REG_XCC_ID)')
        g('s_and_b32 s77, s77, 7')
        g('s_cmp_eq_u32 s77, %d' % (trip[2] & 7))
        g('s_cbranch_scc0 L_notrip')
        g('v_cvt_f32_u32 v32, s76')
        g('v_mul_f32 v32, 0x3c23d70a, v32')
        g.label('L_notrip')
    g('v_cvt_pk_bf16_f32 v32, v32, v32')
    g('buffer_store_short v32, v88, s[44:47], 0 offen')
    g('s_cmp_eq_u32 s2, 176')
    g('s_cbranch_scc0 L_nobump')
    g('v_mov_b32 v33, s42')
    g(f's_mov_b32 s11, {EPOCH}')
    g('s_mov_b64 exec, 1')
    g('buffer_store_dword v33, v21, s[52:55], s11 offen sc1')
    g.label('L_nobump')
    stamp(11)
    g.label('L_hend')
    if dbgt:
        g('s_cmp_eq_u32 s10, 3')
        g('s_cbranch_scc0 L_exit')
        g('s_memrealtime s[76:77]')
        srd(72, 38, 39, 256)
        g('s_waitcnt lgkmcnt(0)')
        g('s_mov_b64 exec, 1')
        g('v_mov_b32 v8, 0')
        g('v_mov_b32 v4, s76')
        g('s_not_b32 s79, s78')
        g('v_mov_b32 v5, s79')
        g('v_mov_b32 v6, s78')
        g('v_mov_b32 v7, s80')
        g('s_not_b32 s79, s80')
        g('v_mov_b32 v9, s79')
        g('v_mov_b32 v10, s82')
        g('s_not_b32 s79, s82')
        g('v_mov_b32 v11, s79')
        g('buffer_atomic_umax v4, v8, s[72:75], 0 offen')
        g('buffer_atomic_umax v5, v8, s[72:75], 0 offen offset:4')
        g('buffer_atomic_umax v6, v8, s[72:75], 0 offen offset:8')
        g('buffer_atomic_umax v7, v8, s[72:75], 0 offen offset:12')
        g('buffer_atomic_umax v9, v8, s[72:75], 0 offen offset:16')
        g('buffer_atomic_umax v10, v8, s[72:75], 0 offen offset:20')
        g('buffer_atomic_umax v11, v8, s[72:75], 0 offen offset:24')
    stamp_flush()
    g.label('L_exit')
    g('s_endpgm')

    out = HEADER
    out += f"; @launch grid=(256,1,1) block=(512,1,1) lds={LDS_SZ}\n"
    out += '.amdgcn_target "amdgcn-amd-amdhsa--gfx950"\n.text\n'
    out += f'.globl {NAME}_kernel\n.p2align 8\n.type {NAME}_kernel,@function\n{NAME}_kernel:\n'
    out += '\n'.join(g.L) + '\n'
    out += f""".section .rodata,"a"
.p2align 6
.amdhsa_kernel {NAME}_kernel
  .amdhsa_next_free_vgpr 256
  .amdhsa_next_free_sgpr 96
  .amdhsa_accum_offset 256
  .amdhsa_group_segment_fixed_size 0
  .amdhsa_kernarg_size 104
  .amdhsa_user_sgpr_count 2
  .amdhsa_user_sgpr_kernarg_segment_ptr 1
  .amdhsa_system_sgpr_workgroup_id_x 1
  .amdhsa_float_denorm_mode_32 3
.end_amdhsa_kernel
"""
    return out

if __name__ == '__main__':
    kw = eval('dict(' + (sys.argv[2] if len(sys.argv) > 2 else '') + ')')
    open(sys.argv[1], 'w').write(gen(**kw))
```

```python
import sys, math, struct
from gen import NAME, HEADER, f2u, G, vr

UIN = 0
UIN_SZ = 46*8*1024
OIN = UIN + UIN_SZ
OIN_SZ = 256*512
YIN = OIN + OIN_SZ
YIN_SZ = 80*2048
FIN = YIN + YIN_SZ
FIN_SZ = 80*2048
MLIN = FIN + FIN_SZ
MLIN_SZ = 64*128
EPOCH = MLIN + MLIN_SZ
WS_USED = EPOCH + 128
STAMP = 4 << 20
BIG = 0x7ffff000

L_QP = 0
L_MLW = 1024
L_FAC = L_MLW + 32
L_OP = L_FAC + 32
L_YP = L_OP + 2048
LDS_SZ = L_YP + 4096

def gen(NS=3, PB=8, VB=6, PCAP=6, WCAP=8, SCAP=6, VCAP=6, VEND=16, VSW=6, rot=1, diag=False, wnt=' nt', mimic=True, hfirst=True, kvmod=' nt',
        spin=1<<17, abl='', UCAP=20, dbgt=False, qspread=True, trip=None, OCAP=None, rotk=None, rot3=None, pad=None):
    R = NS * 16
    if 'x' in abl or 'p' in abl: spin = 0
    g = G()
    DM = 'row_mask:0xf'
    def stamp(idx):
        if diag:
            g(f's_memrealtime s[76:77]')
            g('s_waitcnt lgkmcnt(0)')
            g(f's_mov_b32 s{80+idx}, s76')
    def stamp_flush():
        if diag:
            g('s_lshl_b32 s76, s2, 3')
            g('s_add_u32 s76, s76, s3')
            g('s_lshl_b32 s76, s76, 6')
            g(f's_add_u32 s76, s76, {STAMP}')
            g('s_mov_b64 exec, 1')
            for q in range(4):
                for r in range(4):
                    g(f'v_mov_b32 v{4+r}, s{80+4*q+r}')
                g('v_mov_b32 v8, 0')
                g(f'buffer_store_dwordx4 v[4:7], v8, s[72:75], s76 offen offset:{16*q}')
                g('s_nop 1')
            g('s_waitcnt vmcnt(0)')
    def srd(d, lo, hi, size):
        g(f's_mov_b32 s{d}, s{lo}')
        g(f's_mov_b32 s{d+1}, s{hi}')
        g(f's_mov_b32 s{d+2}, {size}')
        g(f's_mov_b32 s{d+3}, 0x20000')
    def masks():
        g('v_and_b32 v2, 1, v0')
        g('v_lshlrev_b32 v2, 4, v2')
        g('v_mov_b32 v3, 0xffff')
        g('v_lshlrev_b32 v3, v2, v3')
        g('v_bfe_u32 v2, v0, 1, 2')
        for t in range(4):
            g(f'v_cmp_eq_u32 vcc, {t}, v2')
            g('s_nop 1')
            g(f'v_cndmask_b32 v{6+t}, 0, v3, vcc')
    lab = [0]
    def poll_tail(okl, againl, sleep):
        g('s_sub_u32 s12, s12, 1')
        g(f's_cbranch_scc1 {okl}')
        if sleep:
            g(f's_cbranch_vccz {okl}')
            g(f's_sleep {sleep}')
            g(f's_branch {againl}')
        else:
            g(f's_cbranch_vccnz {againl}')
        g.label(okl)

    def tag(a, n=4):
        for r in range(n):
            g(f'v_and_or_b32 v{a+r}, v{a+r}, s60, v92')
    def untag(a, n, t):
        for r in range(n):
            g(f'v_xor_b32 v{a+r}, s43, v{a+r}')
        g(f'v_or3_b32 v{t}, v{a}, v{a+1}, v{a+2}')
        for e in range(3, n-1, 2):
            g(f'v_or3_b32 v{t}, v{t}, v{a+e}, v{a+e+1}')
        g(f'v_or_b32 v{t}, v{t}, v{a+n-1}')
        g(f'v_and_b32 v{t}, 0xff, v{t}')
        g(f'v_cmp_ne_u32 vcc, 0, v{t}')
    g('s_cmp_ge_u32 s2, 256')
    g('s_cbranch_scc1 L_exit')
    if diag or dbgt or trip or pad:
        g('s_memrealtime s[78:79]')
    g('s_load_dwordx16 s[16:31], s[0:1], 0')
    g('s_load_dwordx8 s[32:39], s[0:1], 64')
    g('s_load_dwordx2 s[40:41], s[0:1], 96')
    g('v_lshrrev_b32 v1, 6, v0')
    g('v_and_b32 v0, 63, v0')
    g('v_readfirstlane_b32 s3, v1')
    g('s_and_b32 s4, s2, 7')
    g('s_lshr_b32 s5, s2, 3')
    g('s_lshr_b32 s6, s5, 3')
    g('s_lshl_b32 s7, s4, 2')
    g('s_add_u32 s6, s6, s7')
    g('s_bfe_u32 s7, s5, 0x10002')
    g('s_and_b32 s8, s5, 3')
    g('s_and_b32 s5, s5, 7')
    g('s_lshl_b32 s9, s7, 5')
    g('s_add_u32 s9, s9, s6')
    g('s_and_b32 s10, s3, 3')
    if diag:
        for i in range(16):
            g(f's_mov_b32 s{80+i}, 0')
    g('s_cmp_ge_u32 s3, 4')
    g('s_cbranch_scc%d L_helper' % (0 if hfirst else 1))

    RB = 64
    def slot(k, s): return RB + 4*(16*k + s)
    g('v_lshlrev_b32 v1, 4, v0')
    g('s_lshl_b32 s13, s8, 2')
    g('s_add_u32 s13, s13, s10')
    g('s_lshl_b32 s13, s13, 12')
    if rot:
        if rot3:
            g('s_and_b32 s14, s6, 3')
            g(f's_mul_i32 s14, s14, {rot3[0]*1024}')
            g(f's_mul_i32 s15, s4, {rot3[1]*1024}')
            g('s_add_u32 s14, s14, s15')
            g(f's_mul_i32 s15, s7, {rot3[2]*1024}')
            g('s_add_u32 s14, s14, s15')
        else:
            g(f's_mul_i32 s14, s9, {rot*65536 if rotk is None else rotk*1024}')
        g('s_add_u32 s13, s13, s14')
        g('s_and_b32 s13, s13, 0x1fffff')
    g('s_lshl_b32 s11, s9, 21')
    g('s_mov_b32 s46, 0x200000')
    g('s_mov_b32 s47, 0x20000')
    g('s_waitcnt lgkmcnt(0)')
    g('s_add_u32 s44, s18, s11')
    g('s_addc_u32 s45, s19, 0')
    def issue_piece(k, pc, cap, first=10**9, cap2=None):
        caps = cap if isinstance(cap, (tuple, list)) else (cap,)*4
        caps2 = cap2 if isinstance(cap2, (tuple, list)) else (cap2,)*4
        for i in range(4):
            r = slot(k, 4*pc+i)
            c1, c2 = caps[i], caps2[i]
            if first + i >= c1:
                if c2 is not None and c2 != c1:
                    lab[0] += 1
                    g(f's_cbranch_scc1 L_c{lab[0]}')
                    g(f's_waitcnt vmcnt({c1-1})')
                    g.label(f'L_c{lab[0]}')
                    if c2 < 16: g(f's_waitcnt vmcnt({c2-1})')
                else:
                    g(f's_waitcnt vmcnt({c1-1})')
            g(f'buffer_load_dwordx4 {vr(r)}, v1, s[44:47], s13 offen offset:{1024*i}{kvmod}')
        g('s_add_u32 s13, s13, 0x10000')
        g('s_and_b32 s13, s13, 0x1fffff')
    issue_piece(0, 0, PCAP, 0)
    g('s_add_u32 s48, s20, s11')
    g('s_addc_u32 s49, s21, 0')
    if diag:
        srd(72, 40, 41, STAMP + (1<<20))
        g('s_mov_b32 s80, s78')
    masks()
    g(f's_mov_b32 s14, {NS}')
    if OCAP is not None:
        g('s_getreg_b32 s56, hwreg(HW_REG_XCC_ID)')
        g('s_and_b32 s56, s56, 1')
    g('s_mov_b32 s50, 0xcccccccc')
    g('s_mov_b32 s51, 0xcccccccc')
    g('s_mov_b32 s52, 0xaaaaaaaa')
    g('s_mov_b32 s53, 0xaaaaaaaa')
    g('v_and_b32 v28, 15, v0')
    g('v_lshlrev_b32 v28, 5, v28')
    for k in range(NS):
        for pc in range(4):
            if k or pc:
                issue_piece(k, pc, PCAP, 16*k+4*pc)
                if diag:
                    g('s_memrealtime s[76:77]')
                    g('s_waitcnt lgkmcnt(0)')
                    g(f'v_writelane_b32 v63, s76, {32+4*k+pc}')
                if 4*k+pc == PB:
                    g('s_barrier')
    stamp(1)
    g('s_barrier')
    stamp(2)
    for u in range(2):
        g(f'ds_read_b128 {vr(32+8*u)}, v28 offset:{L_QP+512*u}')
        g(f'ds_read_b128 {vr(36+8*u)}, v28 offset:{L_QP+512*u+16}')
    g('s_waitcnt lgkmcnt(0)')
    for e in range(8):
        g(f'v_add_f32 v{32+e}, v{32+e}, v{40+e}')
    for t in range(4):
        g(f'v_cvt_pk_bf16_f32 v{2+t}, v{32+2*t}, v{33+2*t}')

    def blk_stamp():
        if diag:
            g('s_memrealtime s[76:77]')
            g('s_mov_b32 m0, s14')
            g('s_waitcnt lgkmcnt(0)')
            g('v_writelane_b32 v63, s76, m0')
    def kblock(k):
        blk_stamp()
        g('s_cmp_eq_u32 s14, 8')
        g('s_cselect_b32 s44, s48, s44')
        g('s_cselect_b32 s45, s49, s45')
        g('s_cmp_le_u32 s14, 8')
        g('s_cselect_b64 vcc, -1, 0')
        g('s_add_u32 s14, s14, 1')
        for pc in range(4):
            for t in range(4):
                for i in range(4):
                    r = slot(k, 4*pc+i) + t
                    if t == 0:
                        g(f'v_dot2_f32_bf16 v{18+i}, v{r}, v2, 0')
                    else:
                        g(f'v_dot2c_f32_bf16 v{18+i}, v{r}, v{2+t}')
            g('s_nop 2')
            g(f'v_add_f32_dpp v22, v18, v18 row_ror:8 {DM} bank_mask:0x3')
            g(f'v_add_f32_dpp v23, v20, v20 row_ror:8 {DM} bank_mask:0x3')
            g(f'v_add_f32_dpp v22, v19, v19 row_ror:8 {DM} bank_mask:0xc')
            g(f'v_add_f32_dpp v23, v21, v21 row_ror:8 {DM} bank_mask:0xc')
            g('s_nop 0')
            g(f'v_add_f32_dpp v{24+pc}, v22, v22 row_shl:4 {DM} bank_mask:0x5')
            g(f'v_add_f32_dpp v{24+pc}, v23, v23 row_shr:4 {DM} bank_mask:0xa')
            g(f's_cbranch_vccz L_kni{k}_{pc}')
            if OCAP is not None:
                g('s_cmp_lg_u32 s56, 0')
                issue_piece(k, pc, SCAP, cap2=OCAP)
            else:
                issue_piece(k, pc, SCAP)
            g.label(f'L_kni{k}_{pc}')
        for e in range(7):
            g(f'v_mov_b32 v{10+e}, v{11+e}')
        for pc in range(4):
            g(f'v_add_f32_dpp v{24+pc}, v{24+pc}, v{24+pc} quad_perm:[2,3,0,1] {DM} bank_mask:0xf')
        g('v_cndmask_b32 v24, v24, v25, s[50:51]')
        g('v_cndmask_b32 v26, v26, v27, s[50:51]')
        g('s_nop 0')
        g(f'v_add_f32_dpp v24, v24, v24 quad_perm:[1,0,3,2] {DM} bank_mask:0xf')
        g(f'v_add_f32_dpp v26, v26, v26 quad_perm:[1,0,3,2] {DM} bank_mask:0xf')
        g('v_cndmask_b32 v17, v24, v26, s[52:53]')
    def pi(pc, i): return 8*(i & 1) + 4*(i >> 1) + 2*(pc & 1) + (pc >> 1)
    def vblock(k):
        blk_stamp()
        g(f's_cmp_lt_u32 s14, {15+NS}')
        g('s_cselect_b64 vcc, -1, 0')
        g('s_add_u32 s14, s14, 1')
        for pc in range(4):
            for i in range(4):
                for t in range(4):
                    g(f'v_and_b32_dpp v{36+4*i+t}, v10, v{6+t} row_newbcast:{pi(pc,i)} {DM} bank_mask:0xf')
            g('s_waitcnt vmcnt(12)')
            if pc:
                g(f's_cbranch_vccnz L_vgo{pc}')
                g(f's_waitcnt vmcnt({12-4*pc})')
                g.label(f'L_vgo{pc}')
            else:
                g('s_nop 0')
            for i in range(4):
                r = slot(k, 4*pc+i)
                g(f'v_mfma_f32_16x16x32_bf16 v[32:35], {vr(36+4*i)}, {vr(r)}, v[32:35]')
            g(f's_cbranch_vccz L_vni{pc}')
            if OCAP is not None:
                g('s_cmp_lg_u32 s56, 0')
                issue_piece(k, pc, VCAP, cap2=OCAP)
            elif VEND != VCAP:
                g(f's_cmp_gt_u32 s14, {8+NS+VSW}')
                issue_piece(k, pc, VCAP, cap2=VEND)
            else:
                issue_piece(k, pc, VCAP)
            g.label(f'L_vni{pc}')
        for e in range(7):
            g(f'v_mov_b32 v{10+e}, v{11+e}')

    g.label('L_kloop')
    for k in range(NS):
        kblock(k)
        if k == (7 % NS):
            g(f's_cmp_eq_u32 s14, {8+NS}')
            if k == NS-1:
                g('s_cbranch_scc0 L_kloop')
            else:
                g('s_cbranch_scc1 L_soft')
    if (7 % NS) != NS-1:
        g('s_branch L_kloop')
    g.label('L_soft')
    stamp(3)
    scale = 128 ** -0.5
    log2e = math.log2(math.e)
    if mimic:
        g(f's_mov_b32 s54, 0x{f2u(scale):08x}')
        g(f's_mov_b32 s55, 0x{f2u(log2e):08x}')
        for e in range(8):
            g(f'v_cvt_pk_bf16_f32 v{10+e}, 0, v{10+e}')
        for e in range(8):
            g(f'v_mul_f32 v{10+e}, s54, v{10+e}')
        for e in range(8):
            g(f'v_cvt_pk_bf16_f32 v{10+e}, 0, v{10+e}')
        for e in range(8):
            g(f'v_mul_f32 v{10+e}, s55, v{10+e}')
    else:
        g(f's_mov_b32 s55, 0x{f2u(scale*log2e):08x}')
        for e in range(8):
            g(f'v_mul_f32 v{10+e}, s55, v{10+e}')
    def rowswaps(op, r, t):
        for sw in ('v_permlane16_swap_b32', 'v_permlane32_swap_b32'):
            g(f'v_mov_b32 v{t}, v{r}')
            g('s_nop 1')
            g(f'{sw} v{r}, v{t}')
            g('s_nop 1')
            g(f'{op} v{r}, v{r}, v{t}')
    def allreduce(op, r, t):
        g('s_nop 1')
        for m in ('row_ror:8', 'row_ror:4', 'row_ror:2', 'row_ror:1'):
            g(f'{op}_dpp v{r}, v{r}, v{r} {m} {DM} bank_mask:0xf')
            g('s_nop 1')
        rowswaps(op, r, t)
    g('v_max3_f32 v18, v10, v11, v12')
    g('v_max3_f32 v19, v13, v14, v15')
    g('v_max3_f32 v18, v18, v16, v17')
    g('v_max_f32 v18, v18, v19')
    allreduce('v_max_f32', 18, 20)
    for e in range(8):
        g(f'v_sub_f32 v{10+e}, v{10+e}, v18')
    for e in range(8):
        g(f'v_exp_f32 v{10+e}, v{10+e}')
    g('s_nop 0')
    g('v_add_f32 v19, v10, v11')
    g('v_add_f32 v20, v12, v13')
    g('v_add_f32 v21, v14, v15')
    g('v_add_f32 v22, v16, v17')
    g('v_add_f32 v19, v19, v20')
    g('v_add_f32 v21, v21, v22')
    g('v_add_f32 v19, v19, v21')
    allreduce('v_add_f32', 19, 20)
    for e in range(8):
        g(f'v_cvt_pk_bf16_f32 v{10+e}, v{10+e}, v{10+e}')
    g('s_lshl_b32 s15, s10, 3')
    g('v_mov_b32 v20, s15')
    g(f'ds_write_b64 v20, v[18:19] offset:{L_MLW}')
    for r in range(4):
        g(f'v_mov_b32 v{32+r}, 0')
    g('v_and_b32 v29, 16, v0')
    g('v_add_u32 v28, v28, v29')
    g('s_lshl_b32 s15, s10, 9')
    g('v_add_u32 v28, s15, v28')
    g('s_waitcnt lgkmcnt(0)')
    g('s_barrier')
    g.label('L_vloop')
    g(f's_cmp_eq_u32 s14, {8+NS+VB}')
    g('s_cbranch_scc0 L_vnb')
    g('s_barrier')
    g.label('L_vnb')
    vblock(8 % NS)
    g('s_cbranch_vccnz L_vloop')
    g(f'ds_write_b128 v28, v[32:35] offset:{L_OP}')
    g('s_waitcnt lgkmcnt(0)')
    stamp(4)
    g('s_barrier')
    if diag:
        g('s_lshl_b32 s76, s2, 3')
        g('s_add_u32 s76, s76, s3')
        g('s_lshl_b32 s76, s76, 8')
        g(f's_add_u32 s76, s76, {STAMP + (1<<18)}')
        g('v_lshlrev_b32 v8, 2, v0')
        g('buffer_store_dword v63, v8, s[72:75], s76 offen')
    stamp_flush()
    g('s_endpgm')

    g.label('L_helper')
    g('v_lshrrev_b32 v3, 4, v0')
    g('v_and_b32 v4, 15, v0')
    g('v_bfe_u32 v5, v0, 3, 1')
    g('s_lshr_b32 s13, s2, 3')
    g('s_add_u32 s14, s13, 32')
    g('s_cmp_eq_u32 s10, 0')
    g('s_cselect_b32 s64, %s, s14' % ('s13' if qspread else 's6'))
    g('s_cselect_b32 s65, %s, s4' % ('s4' if qspread else 's5'))
    g('s_movk_i32 s14, 3456')
    g('s_cselect_b32 s66, 0x2000, s14')
    g('s_cselect_b32 s67, %s, s13' % ('s13' if qspread else 's6'))
    g('s_lshl_b32 s67, s67, 8')
    g('s_cmp_lt_u32 s2, 112')
    g('s_cselect_b32 s68, 2, 1')
    g('s_cmp_lt_u32 s10, s68')
    g('s_cselect_b32 s68, 1, 0')
    g('v_and_b32 v1, 7, v0')
    g('v_lshl_add_u32 v1, v3, 3, v1')
    g('v_mul_u32_u24 v1, 40, v1')
    g('v_mul_u32_u24 v20, 1280, v5')
    g('v_add_u32 v1, v1, v20')
    g('s_lshl_b32 s11, s65, 2')
    g('v_add_u32 v2, s11, v3')
    g('v_mul_u32_u24 v2, 40, v2')
    g('v_add_u32 v2, v2, v20')
    g('s_mul_i32 s11, s66, 20')
    g('v_mul_u32_u24 v21, s11, v3')
    g('v_lshl_add_u32 v21, v4, 4, v21')
    g('s_cmp_eq_u32 s64, 45')
    g('s_cselect_b32 s11, 8, 16')
    g('v_cmp_gt_u32 vcc, s11, v4')
    g(f'v_mov_b32 v22, 0x{BIG:x}')
    g('s_mul_i32 s12, s65, 80')
    g('v_cndmask_b32 v21, v22, v21, vcc')
    g('s_mul_i32 s12, s12, s66')
    g('s_add_u32 s12, s12, s67')
    g('s_mul_i32 s50, s66, 640')
    g('s_mov_b32 s51, 0x20000')
    g('s_movk_i32 s46, 2560')
    g('s_mov_b32 s47, 0x20000')
    g('s_cmp_eq_u32 s10, 0')
    g('s_waitcnt lgkmcnt(0)')
    g(f's_load_dword s42, s[40:41], {EPOCH}')
    g('s_mov_b32 s44, s16')
    g('s_mov_b32 s45, s17')
    g('s_cselect_b32 s48, s22, s28')
    g('s_cselect_b32 s49, s23, s29')
    if diag:
        srd(72, 40, 41, STAMP + (1<<20))
        g('s_mov_b32 s80, s78')
    if 'h' in abl:
        stamp_flush()
        g('s_endpgm')
    if 'w' in abl: g('s_mov_b32 s50, 0')
    g('s_cmp_eq_u32 s68, 0')
    g('s_cbranch_scc1 L_noload')
    XS, XC, WB = 30, 40, 96
    for base, vo in ((XS, 'v1'), (XC, 'v2')):
        g(f'buffer_load_dwordx4 {vr(base)}, {vo}, s[44:47], 0 offen')
        g(f'buffer_load_dwordx4 {vr(base+4)}, {vo}, s[44:47], 0 offen offset:16')
        g(f'buffer_load_dwordx2 {vr(base+8,2)}, {vo}, s[44:47], 0 offen offset:32')
    for i in range(20):
        g(f'buffer_load_dwordx4 {vr(WB+4*i)}, v21, s[48:51], s12 offen{wnt}')
        if i < 19: g('s_add_u32 s12, s12, s66')
    g.label('L_noload')
    srd(52, 40, 41, WS_USED)
    masks()
    g('v_lshrrev_b32 v3, 4, v0')
    g('v_lshrrev_b32 v23, 5, v0')
    g('v_lshlrev_b32 v23, 9, v23')
    g('v_lshl_add_u32 v23, v4, 5, v23')
    g('v_and_b32 v24, 16, v0')
    g('v_add_u32 v23, v23, v24')
    g('v_lshrrev_b32 v25, 5, v0')
    g('v_mul_u32_u24 v25, 40, v25')
    g('v_bfe_u32 v26, v0, 2, 3')
    g('v_add_u32 v25, v25, v26')
    g('v_lshlrev_b32 v25, 11, v25')
    g('v_and_b32 v26, 3, v0')
    g('v_lshl_add_u32 v25, v26, 4, v25')
    g('v_and_b32 v26, 31, v0')
    g('v_cmp_gt_u32 vcc, 20, v26')
    g(f'v_mov_b32 v22, 0x{BIG:x}')
    g(f's_mul_i32 s69, s5, {5*2048}')
    g('v_cndmask_b32 v27, v22, v25, vcc')
    g('s_lshl_b32 s11, s6, 6')
    g('s_add_u32 s69, s69, s11')
    g(f's_add_u32 s69, s69, {YIN}')
    g('v_cmp_gt_u32 vcc, 32, v0')
    g('v_lshlrev_b32 v29, 4, v0')
    g('s_lshl_b32 s70, s6, 3')
    g('v_cndmask_b32 v28, v22, v29, vcc')
    g('s_add_u32 s70, s70, s5')
    g('s_lshl_b32 s70, s70, 9')
    g(f's_add_u32 s70, s70, {OIN}')
    g('v_mov_b32 v88, v22')
    g('s_lshl_b32 s71, s9, 7')
    g(f's_add_u32 s71, s71, {MLIN}')
    g('s_sub_u32 s11, s2, 112')
    g('s_mul_i32 s56, s11, 13108')
    g('s_lshr_b32 s56, s56, 16')
    g('s_mul_i32 s57, s56, 5')
    g('s_sub_u32 s57, s11, s57')
    g('s_lshl_b32 s58, s57, 14')
    g('s_lshl_b32 s11, s56, 6')
    g('s_add_u32 s58, s58, s11')
    g(f's_add_u32 s58, s58, {FIN}')
    g('s_waitcnt lgkmcnt(0)')
    g('s_add_u32 s42, s42, 1')
    g('s_and_b32 s43, s42, 0xff')
    g('v_mov_b32 v92, s43')
    g('s_movk_i32 s60, 0xff00')
    g('s_cmp_eq_u32 s68, 0')
    g('s_cbranch_scc0 L_unit')
    g('s_branch L_bar1a')

    g.label('L_unit')
    g('s_waitcnt vmcnt(23)')
    stamp(1)
    U = 50
    for k in range(10):
        g(f'v_lshlrev_b32 v{U+2*k}, 16, v{XS+k}')
        g(f'v_and_b32 v{U+2*k+1}, 0xffff0000, v{XS+k}')
    g(f'v_pk_add_f32 v[70:71], v[{U}:{U+1}], v[{U+2}:{U+3}]')
    for k in range(2, 10):
        g(f'v_pk_add_f32 v[70:71], v[70:71], v[{U+2*k}:{U+2*k+1}]')
    g('v_add_f32 v70, v70, v71')
    def red_batch(r, t):
        for m in ('row_half_mirror', 'quad_perm:[2,3,0,1]', 'quad_perm:[1,0,3,2]'):
            g('s_nop 1')
            g(f'v_add_f32_dpp v{r}, v{r}, v{r} {m} {DM} bank_mask:0xf')
        rowswaps('v_add_f32', r, t)
    red_batch(70, 71)
    g(f's_mov_b32 s11, 0x{f2u(1.0/640):08x}')
    g('v_mul_f32 v70, s11, v70')
    for k in range(10):
        g(f'v_pk_add_f32 v[{U+2*k}:{U+2*k+1}], v[{U+2*k}:{U+2*k+1}], v[70:71] op_sel_hi:[1,0] neg_lo:[0,1] neg_hi:[0,1]')
    g(f'v_pk_mul_f32 v[72:73], v[{U}:{U+1}], v[{U}:{U+1}]')
    for k in range(1, 10):
        g(f'v_pk_fma_f32 v[72:73], v[{U+2*k}:{U+2*k+1}], v[{U+2*k}:{U+2*k+1}], v[72:73]')
    g('v_add_f32 v72, v72, v73')
    red_batch(72, 73)
    g('v_mul_f32 v72, s11, v72')
    g('v_cvt_pk_bf16_f32 v72, 0, v72')
    g(f'v_add_f32 v72, 0x{f2u(1e-5):08x}, v72')
    g('v_cvt_pk_bf16_f32 v72, 0, v72')
    g('v_sqrt_f32 v72, v72')
    g('v_cvt_pk_bf16_f32 v70, 0, v70')
    g('v_cvt_pk_bf16_f32 v72, 0, v72')
    g('v_rcp_f32 v74, v72')
    g('s_waitcnt vmcnt(20)')
    for k in range(10):
        g(f'v_lshlrev_b32 v{U+2*k}, 16, v{XC+k}')
        g(f'v_and_b32 v{U+2*k+1}, 0xffff0000, v{XC+k}')
    for k in range(10):
        g(f'v_pk_add_f32 v[{U+2*k}:{U+2*k+1}], v[{U+2*k}:{U+2*k+1}], v[70:71] op_sel_hi:[1,0] neg_lo:[0,1] neg_hi:[0,1]')
    for e in range(20):
        g(f'v_cvt_pk_bf16_f32 v{U+e}, 0, v{U+e}')
    for k in range(10):
        p = f'v[{U+2*k}:{U+2*k+1}]'
        g(f'v_pk_mul_f32 v[76:77], {p}, v[74:75] op_sel_hi:[1,0]')
        g(f'v_pk_fma_f32 {p}, v[76:77], v[72:73], {p} op_sel_hi:[1,0,1] neg_lo:[1,0,0] neg_hi:[1,0,0]')
        g(f'v_pk_fma_f32 {p}, {p}, v[74:75], v[76:77] op_sel_hi:[1,0,1]')
    for e in range(20):
        g(f'v_cvt_pk_bf16_f32 v{U+e}, v{U+e}, v{U+e}')
    stamp(2)
    for i in range(20):
        a = 36 + 4*(i & 1)
        for t in range(4):
            g(f'v_and_b32 v{a+t}, v{U+i}, v{6+t}')
        g(f's_waitcnt vmcnt({19-i})')
        g('s_nop 0')
        c_ = '0' if i == 0 else 'v[32:35]'
        g(f'v_mfma_f32_16x16x32_bf16 v[32:35], {vr(a)}, {vr(WB+4*i)}, {c_}')
    g('s_lshl_b32 s13, s64, 3')
    g('s_add_u32 s13, s13, s65')
    g('s_lshl_b32 s13, s13, 10')
    g('s_nop 4')
    tag(32)
    g('buffer_store_dwordx4 v[32:35], v29, s[52:55], s13 offen sc1')
    stamp(3)
    g.label('L_bar1a')
    g('s_barrier')
    g('s_cmp_eq_u32 s10, 0')
    g('s_cbranch_scc0 L_bar1')
    g('v_lshrrev_b32 v36, 5, v0')
    g('v_lshlrev_b32 v36, 10, v36')
    g('v_and_b32 v37, 31, v0')
    g('v_lshl_add_u32 v36, v37, 4, v36')
    g('s_lshl_b32 s13, s6, 13')
    g('s_lshl_b32 s11, s7, 9')
    g('s_add_u32 s13, s13, s11')
    g('s_add_u32 s14, s13, 4096')
    g(f's_mov_b32 s12, {spin}')
    g.label('L_qg')
    for i in range(4):
        g(f'buffer_load_dwordx4 {vr(40+4*i)}, v36, s[52:55], {"s13" if i < 2 else "s14"} offen offset:{2048*(i&1)} sc1')
    g('s_waitcnt vmcnt(0)')
    if diag:
        g(f's_cmp_eq_u32 s12, {spin}')
        g('s_cbranch_scc0 L_qg_ns')
        stamp(13)
        g.label('L_qg_ns')
    untag(40, 16, 37)
    poll_tail('L_qg_ok', 'L_qg', 0)
    if diag:
        g(f's_sub_u32 s92, {spin}, s12')
        g('s_mul_i32 s92, s92, 100')
        g('s_add_u32 s92, s92, s78')
    for r in range(4):
        g(f'v_add_f32 v{40+r}, v{40+r}, v{44+r}')
        g(f'v_add_f32 v{48+r}, v{48+r}, v{52+r}')
    for r in range(4):
        g(f'v_add_f32 v{40+r}, v{40+r}, v{48+r}')
    g(f'ds_write_b128 v23, v[40:43] offset:{L_QP}')
    g('s_waitcnt lgkmcnt(0)')
    g.label('L_bar1')
    stamp(4)
    g('s_barrier')
    if dbgt:
        g('s_memrealtime s[82:83]')
        g('s_waitcnt lgkmcnt(0)')
    stamp(5)
    WOB = 192
    g(f's_mul_i32 s11, s6, {128*1280}')
    g('s_add_u32 s48, s24, s11')
    g('s_addc_u32 s49, s25, 0')
    g(f's_mov_b32 s50, {128*1280}')
    g('s_mov_b32 s51, 0x20000')
    g(f'v_mul_u32_u24 v20, {8*1280}, v3')
    g('v_lshl_add_u32 v20, v4, 4, v20')
    g('v_cmp_gt_u32 vcc, 10, v4')
    g(f's_mul_i32 s11, s10, {32*1280}')
    g('s_mul_i32 s12, s5, 160')
    g('v_cndmask_b32 v20, v22, v20, vcc')
    g('s_add_u32 s11, s11, s12')
    for rg in range(8):
        if rg and rg % 3 == 0:
            g(f's_add_u32 s11, s11, {3*1280}')
        if rg >= WCAP: g(f's_waitcnt vmcnt({WCAP-1})')
        g(f'buffer_load_dwordx4 {vr(WOB+4*rg)}, v20, s[48:51], s11 offen offset:{1280*(rg%3)}{wnt}')
    g('s_cmp_ge_u32 s2, 176')
    g('s_cselect_b32 s11, 1, 0')
    g('s_cmp_eq_u32 s10, 3')
    g('s_cselect_b32 s59, s11, 0')
    g('s_sub_u32 s11, s2, 112')
    g('s_cmp_lt_u32 s11, 135')
    g('s_cselect_b32 s11, 1, 0')
    g('s_cmp_eq_u32 s10, 1')
    g('s_cselect_b32 s13, s11, 0')
    g('s_cmp_eq_u32 s13, 0')
    g('s_cbranch_scc1 L_bark')
    srd(44, 32, 33, 1728*1280)
    srd(48, 30, 31, 3456)
    g(f'v_mul_u32_u24 v20, {16*1280}, v3')
    g('v_lshl_add_u32 v20, v4, 4, v20')
    g(f's_mul_i32 s11, s56, {64*1280}')
    g('s_lshl_b32 s12, s57, 8')
    g('s_add_u32 s11, s11, s12')
    for rg in range(16):
        if rg and rg % 3 == 0:
            g(f's_add_u32 s11, s11, {3*1280}')
        if rg >= 4: g('s_waitcnt vmcnt(3)')
        g(f'buffer_load_dwordx4 {vr(WB+4*rg)}, v20, s[44:47], s11 offen offset:{1280*(rg%3)}{wnt}')
    g('v_lshlrev_b32 v21, 5, v3')
    g('s_lshl_b32 s11, s56, 7')
    g('buffer_load_dwordx4 v[80:83], v21, s[48:51], s11 offen')
    g('buffer_load_dwordx4 v[84:87], v21, s[48:51], s11 offen offset:16')
    g('v_and_b32 v36, 7, v0')
    g('v_lshlrev_b32 v36, 10, v36')
    g('v_lshl_add_u32 v36, v5, 9, v36')
    g('v_lshl_add_u32 v36, v3, 5, v36')
    g('s_lshr_b32 s13, s56, 1')
    g('s_add_u32 s13, s13, 32')
    g('s_lshl_b32 s13, s13, 13')
    g('s_and_b32 s11, s56, 1')
    g('s_lshl_b32 s11, s11, 7')
    g('s_add_u32 s13, s13, s11')
    g(f's_mov_b32 s12, {spin}')
    g.label('L_hg')
    for i in range(4):
        g(f'buffer_load_dwordx4 {vr(48+4*i)}, v36, s[52:55], s13 offen offset:{16*(i>>1) + 256*(i&1)} sc1')
    g('s_waitcnt vmcnt(0)')
    untag(48, 16, 37)
    poll_tail('L_hg_ok', 'L_hg', 8)
    for m in ('row_half_mirror', 'quad_perm:[2,3,0,1]', 'quad_perm:[1,0,3,2]'):
        for e in range(16):
            g(f'v_add_f32_dpp v{48+e}, v{48+e}, v{48+e} {m} {DM} bank_mask:0xf')
    for k in range(8):
        g(f'v_lshlrev_b32 v{64+2*k}, 16, v{80+k}')
        g(f'v_and_b32 v{65+2*k}, 0xffff0000, v{80+k}')
    for e in range(16):
        g(f'v_cvt_pk_bf16_f32 v{48+e}, 0, v{48+e}')
        g(f'v_add_f32 v{48+e}, v{48+e}, v{64+e}')
        g(f'v_cvt_pk_bf16_f32 v{48+e}, 0, v{48+e}')
        g(f'v_cmp_lt_f32 vcc, 0, v{48+e}')
        g('s_nop 1')
        g(f'v_cndmask_b32 v{48+e}, 0, v{48+e}, vcc')
        g(f'v_mul_f32 v{48+e}, v{48+e}, v{48+e}')
        g(f'v_cvt_pk_bf16_f32 v{48+e}, v{48+e}, v{48+e}')
    for i in range(16):
        a = 36 + 4*(i & 1)
        for t in range(4):
            g(f'v_and_b32 v{a+t}, v{48+i}, v{6+t}')
        g('s_nop 1')
        c_ = '0' if i == 0 else 'v[32:35]'
        g(f'v_mfma_f32_16x16x32_bf16 v[32:35], {vr(a)}, {vr(WB+4*i)}, {c_}')
    g('s_nop 7')
    g(f'ds_write_b128 v23, v[32:35] offset:{L_YP+1024}')
    g('s_waitcnt lgkmcnt(0)')
    g(f'ds_read_b128 v[32:35], v29 offset:{L_YP+1024}')
    g('s_waitcnt lgkmcnt(0)')
    tag(32)
    g('buffer_store_dwordx4 v[32:35], v25, s[52:55], s58 offen sc1')
    g.label('L_bark')
    stamp(6)
    g('s_barrier')
    g('s_cmp_lg_u32 s59, 0')
    g('s_cbranch_scc1 L_cons')
    g('s_cmp_eq_u32 s10, 2')
    g('s_cbranch_scc1 L_ml')
    g('s_barrier')
    g('s_branch L_bar2')

    g.label('L_ml')
    g('v_and_b32 v21, 3, v0')
    g('v_lshlrev_b32 v21, 3, v21')
    g(f'ds_read_b64 v[30:31], v21 offset:{L_MLW}')
    g('s_waitcnt lgkmcnt(0)')
    def quadred(op, r):
        g('s_nop 1')
        g(f'{op}_dpp v{r}, v{r}, v{r} quad_perm:[2,3,0,1] {DM} bank_mask:0xf')
        g('s_nop 1')
        g(f'{op}_dpp v{r}, v{r}, v{r} quad_perm:[1,0,3,2] {DM} bank_mask:0xf')
    g('v_mov_b32 v32, v30')
    quadred('v_max_f32', 32)
    g('v_sub_f32 v33, v30, v32')
    g('v_exp_f32 v33, v33')
    g('s_nop 0')
    g('v_mul_f32 v33, v33, v31')
    quadred('v_add_f32', 33)
    g('v_mov_b32 v40, v32')
    g('v_mov_b32 v41, s42')
    g('v_mov_b32 v42, v33')
    g('v_mov_b32 v43, s42')
    g('s_lshl_b32 s11, s8, 4')
    g('v_mov_b32 v36, s11')
    g('v_lshlrev_b32 v38, 1, v21')
    g('s_mov_b64 exec, 1')
    g('buffer_store_dwordx4 v[40:43], v36, s[52:55], s71 offen sc1')
    g('s_mov_b64 exec, -1')
    g(f's_mov_b32 s12, {spin}')
    g('s_barrier')
    g.label('L_mlg')
    g('buffer_load_dwordx4 v[44:47], v38, s[52:55], s71 offen sc1')
    g('s_waitcnt vmcnt(0)')
    g('v_xor_b32 v45, s42, v45')
    g('v_xor_b32 v47, s42, v47')
    g('v_or_b32 v36, v45, v47')
    g('v_cmp_ne_u32 vcc, 0, v36')
    poll_tail('L_mlg_ok', 'L_mlg', 16)
    g('v_mov_b32 v34, v44')
    g('v_mov_b32 v35, v46')
    g('v_mov_b32 v32, v34')
    quadred('v_max_f32', 32)
    g('v_sub_f32 v33, v34, v32')
    g('v_exp_f32 v33, v33')
    g('s_nop 0')
    g('v_mul_f32 v33, v33, v35')
    quadred('v_add_f32', 33)
    g('v_sub_f32 v30, v30, v32')
    g('v_exp_f32 v30, v30')
    g('v_rcp_f32 v33, v33')
    g('s_nop 0')
    g('v_mul_f32 v30, v30, v33')
    g('v_lshrrev_b32 v21, 1, v21')
    g(f'ds_write_b32 v21, v30 offset:{L_FAC}')
    g('s_waitcnt lgkmcnt(0)')
    g('s_branch L_bar2')

    g.label('L_cons')
    srd(44, 16, 17, 2560)
    srd(48, 34, 35, 1280)
    g('s_sub_u32 s15, s2, 176')
    g('v_and_b32 v88, 3, v0')
    g('v_lshl_add_u32 v88, v88, 2, v3')
    g('s_lshl_b32 s11, s15, 4')
    g('v_add_u32 v88, s11, v88')
    g('v_lshlrev_b32 v88, 1, v88')
    g('buffer_load_ushort v90, v88, s[44:47], 0 offen')
    g('s_cmp_ge_u32 s15, 40')
    g('s_cselect_b32 s11, 1280, 0')
    g('v_subrev_u32 v36, s11, v88')
    g('buffer_load_ushort v91, v36, s[48:51], 0 offen')
    g('v_cmp_gt_u32 vcc, 44, v0')
    g('s_lshl_b32 s13, s15, 11')
    g(f's_add_u32 s13, s13, {FIN}')
    g('v_cndmask_b32 v36, v22, v29, vcc')
    g('v_cndmask_b32 v38, v92, 0, vcc')
    g(f's_mov_b32 s12, {spin}')
    g.label('L_fg')
    g('buffer_load_dwordx4 v[40:43], v29, s[52:55], s13 offen sc1')
    g('buffer_load_dwordx4 v[44:47], v36, s[52:55], s13 offen offset:1024 sc1')
    g('s_waitcnt vmcnt(0)')
    for r in range(4):
        g(f'v_or_b32 v{44+r}, v{44+r}, v38')
    def chk8(a, t):
        untag(a, 8, t)
    chk8(40, 37)
    poll_tail('L_fg_ok', 'L_fg', 16)
    def red16(a):
        for r in range(4):
            g(f'v_add_f32 v{a+r}, v{a+r}, v{a+4+r}')
        for m in ('row_ror:4', 'row_ror:8'):
            for r in range(4):
                g(f'v_add_f32_dpp v{a+r}, v{a+r}, v{a+r} {m} {DM} bank_mask:0xf')
        g('s_nop 0')
        g(f'v_permlane16_swap_b32 v{a}, v{a+1}')
        g(f'v_permlane16_swap_b32 v{a+2}, v{a+3}')
        g('s_nop 0')
        g(f'v_add_f32 v{a}, v{a}, v{a+1}')
        g(f'v_add_f32 v{a+2}, v{a+2}, v{a+3}')
        g('s_nop 1')
        g(f'v_permlane32_swap_b32 v{a}, v{a+2}')
        g('s_nop 1')
        g(f'v_add_f32 v{a}, v{a}, v{a+2}')
    red16(40)
    g('v_cvt_pk_bf16_f32 v32, 0, v40')
    g('v_lshlrev_b32 v91, 16, v91')
    g('v_lshlrev_b32 v90, 16, v90')
    g('v_add_f32 v32, v32, v91')
    g('v_cvt_pk_bf16_f32 v32, 0, v32')
    g(f'v_mul_f32 v33, 0x{f2u(-log2e):08x}, v32')
    g('v_exp_f32 v33, v33')
    g('s_nop 0')
    g('v_add_f32 v33, 1.0, v33')
    g('v_rcp_f32 v33, v33')
    g('s_nop 0')
    g('v_mul_f32 v32, v32, v33')
    g('v_cvt_pk_bf16_f32 v91, 0, v32')
    g('s_barrier')

    g.label('L_bar2')
    srd(44, 36, 37, 2560)
    g('v_and_b32 v20, 3, v0')
    g('v_lshl_add_u32 v20, v5, 2, v20')
    g('v_lshlrev_b32 v20, 9, v20')
    g('v_lshl_add_u32 v20, v3, 5, v20')
    g('s_lshl_b32 s11, s10, 7')
    g('v_add_u32 v20, s11, v20')
    g('s_lshl_b32 s13, s6, 12')
    g(f's_add_u32 s13, s13, {OIN}')
    g('v_mov_b32 v21, 0')
    g('v_and_b32 v30, 0x1f0, v29')
    g('s_lshl_b32 s11, s10, 10')
    g('v_add_u32 v31, s11, v23')
    g('s_sub_u32 s15, s2, 176')
    g('s_lshl_b32 s15, s15, 11')
    g(f's_add_u32 s15, s15, {YIN}')
    g(f's_mov_b32 s12, {spin}')
    g('s_waitcnt vmcnt(0)')
    stamp(7)
    g('s_barrier')
    if dbgt:
        g('s_memrealtime s[80:81]')
        g('s_waitcnt lgkmcnt(0)')
    stamp(8)
    g('s_cmp_eq_u32 s10, 0')
    g('s_cbranch_scc0 L_og')
    g(f'ds_read_b128 v[64:67], v21 offset:{L_FAC}')
    for u in range(4):
        g(f'ds_read_b128 {vr(48+4*u)}, v30 offset:{L_OP+512*u}')
    g('s_waitcnt lgkmcnt(3)')
    for e in range(4):
        g(f'v_mul_f32 v{48+e}, v64, v{48+e}')
    for u in range(1, 4):
        g(f's_waitcnt lgkmcnt({3-u})')
        for e in range(4):
            g(f'v_fmac_f32 v{48+e}, v{64+u}, v{48+4*u+e}')
    tag(48)
    g('buffer_store_dwordx4 v[48:51], v28, s[52:55], s70 offen sc1')
    g.label('L_og')
    g('buffer_load_dwordx4 v[40:43], v20, s[52:55], s13 offen sc1')
    g('buffer_load_dwordx4 v[44:47], v20, s[52:55], s13 offen offset:16 sc1')
    g('s_waitcnt vmcnt(0)')
    chk8(40, 37)
    poll_tail('L_og_ok', 'L_og', 0)
    stamp(9)
    for m in ('quad_perm:[2,3,0,1]', 'quad_perm:[1,0,3,2]'):
        for e in range(8):
            g(f'v_add_f32_dpp v{40+e}, v{40+e}, v{40+e} {m} {DM} bank_mask:0xf')
    for e in range(8):
        g(f'v_cvt_pk_bf16_f32 v{40+e}, v{40+e}, v{40+e}')
    def buildA(a, rg):
        for t in range(4):
            g(f'v_and_b32 v{a+t}, v{40+rg}, v{6+t}')
    buildA(52, 0)
    for rg in range(8):
        a = 52 + 4*(rg & 1)
        if rg < 7:
            buildA(52 + 4*((rg+1) & 1), rg+1)
        else:
            g('s_nop 0')
        c_ = '0' if rg == 0 else 'v[32:35]'
        g(f'v_mfma_f32_16x16x32_bf16 v[32:35], {vr(a)}, {vr(WOB+4*rg)}, {c_}')
    g('s_nop 7')
    g(f'ds_write_b128 v31, v[32:35] offset:{L_YP}')
    g('s_waitcnt lgkmcnt(0)')
    g('s_barrier')
    g('s_cmp_eq_u32 s10, 3')
    g('s_cbranch_scc0 L_hend')
    for u in range(4):
        g(f'ds_read_b128 {vr(48+4*u)}, v29 offset:{L_YP+1024*u}')
    g('s_waitcnt lgkmcnt(2)')
    for r in range(4):
        g(f'v_add_f32 v{48+r}, v{48+r}, v{52+r}')
    g('s_waitcnt lgkmcnt(0)')
    for r in range(4):
        g(f'v_add_f32 v{56+r}, v{56+r}, v{60+r}')
    for r in range(4):
        g(f'v_add_f32 v{48+r}, v{48+r}, v{56+r}')
    tag(48)
    g('buffer_store_dwordx4 v[48:51], v27, s[52:55], s69 offen sc1')
    stamp(10)
    g('s_cmp_eq_u32 s59, 0')
    g('s_cbranch_scc1 L_hend')
    g(f's_mov_b32 s12, {spin}')
    g.label('L_yg')
    g('buffer_load_dwordx4 v[40:43], v29, s[52:55], s15 offen sc1')
    g('buffer_load_dwordx4 v[44:47], v29, s[52:55], s15 offen offset:1024 sc1')
    g('s_waitcnt vmcnt(0)')
    chk8(40, 37)
    poll_tail('L_yg_ok', 'L_yg', 0)
    red16(40)
    g('v_cvt_pk_bf16_f32 v32, 0, v40')
    g('v_mul_f32 v32, v32, v91')
    g('v_cvt_pk_bf16_f32 v32, 0, v32')
    g('v_add_f32 v32, v32, v90')
    if trip:
        g('s_memrealtime s[76:77]')
        g('s_waitcnt lgkmcnt(0)')
        g('s_sub_u32 s76, s76, s78')
        g(f's_cmp_gt_u32 s76, {trip[0]}')
        g('s_cbranch_scc0 L_notrip')
        g(f's_cmp_lt_u32 s76, {trip[1]}')
        g('s_cbranch_scc0 L_notrip')
        g('s_cmp_eq_u32 s2, %d' % trip[2])
        g('s_cbranch_scc0 L_notrip')
        g('s_getreg_b32 s77, hwreg(HW_REG_XCC_ID)')
        g('s_and_b32 s77, s77, 7')
        g('s_cmp_eq_u32 s77, %d' % (trip[2] & 7))
        g('s_cbranch_scc0 L_notrip')
        g('v_cvt_f32_u32 v32, s76')
        g('v_mul_f32 v32, 0x3c23d70a, v32')
        g.label('L_notrip')
    g('v_cvt_pk_bf16_f32 v32, v32, v32')
    g('buffer_store_short v32, v88, s[44:47], 0 offen')
    g('s_cmp_eq_u32 s2, 176')
    g('s_cbranch_scc0 L_nobump')
    g('v_mov_b32 v33, s42')
    g(f's_mov_b32 s11, {EPOCH}')
    g('s_mov_b64 exec, 1')
    g('buffer_store_dword v33, v21, s[52:55], s11 offen sc1')
    g.label('L_nobump')
    if pad:
        g(f's_cmp_eq_u32 s2, {pad[0]}')
        g('s_cbranch_scc0 L_nopad')
        g.label('L_pad')
        g('s_memrealtime s[76:77]')
        g('s_waitcnt lgkmcnt(0)')
        g('s_sub_u32 s76, s76, s78')
        g(f's_cmp_lt_u32 s76, {pad[1]}')
        g('s_cbranch_scc1 L_pad')
        g.label('L_nopad')
    stamp(11)
    g.label('L_hend')
    if dbgt:
        g('s_cmp_eq_u32 s10, 3')
        g('s_cbranch_scc0 L_exit')
        g('s_memrealtime s[76:77]')
        srd(72, 38, 39, 256)
        g('s_waitcnt lgkmcnt(0)')
        g('s_mov_b64 exec, 1')
        g('v_mov_b32 v8, 0')
        g('v_mov_b32 v4, s76')
        g('s_not_b32 s79, s78')
        g('v_mov_b32 v5, s79')
        g('v_mov_b32 v6, s78')
        g('v_mov_b32 v7, s80')
        g('s_not_b32 s79, s80')
        g('v_mov_b32 v9, s79')
        g('v_mov_b32 v10, s82')
        g('s_not_b32 s79, s82')
        g('v_mov_b32 v11, s79')
        g('buffer_atomic_umax v4, v8, s[72:75], 0 offen')
        g('buffer_atomic_umax v5, v8, s[72:75], 0 offen offset:4')
        g('buffer_atomic_umax v6, v8, s[72:75], 0 offen offset:8')
        g('buffer_atomic_umax v7, v8, s[72:75], 0 offen offset:12')
        g('buffer_atomic_umax v9, v8, s[72:75], 0 offen offset:16')
        g('buffer_atomic_umax v10, v8, s[72:75], 0 offen offset:20')
        g('buffer_atomic_umax v11, v8, s[72:75], 0 offen offset:24')
    stamp_flush()
    g.label('L_exit')
    g('s_endpgm')

    out = HEADER
    out += f"; @launch grid=(256,1,1) block=(512,1,1) lds={LDS_SZ}\n"
    out += '.amdgcn_target "amdgcn-amd-amdhsa--gfx950"\n.text\n'
    out += f'.globl {NAME}_kernel\n.p2align 8\n.type {NAME}_kernel,@function\n{NAME}_kernel:\n'
    out += '\n'.join(g.L) + '\n'
    out += f""".section .rodata,"a"
.p2align 6
.amdhsa_kernel {NAME}_kernel
  .amdhsa_next_free_vgpr 256
  .amdhsa_next_free_sgpr 96
  .amdhsa_accum_offset 256
  .amdhsa_group_segment_fixed_size 0
  .amdhsa_kernarg_size 104
  .amdhsa_user_sgpr_count 2
  .amdhsa_user_sgpr_kernarg_segment_ptr 1
  .amdhsa_system_sgpr_workgroup_id_x 1
  .amdhsa_float_denorm_mode_32 3
.end_amdhsa_kernel
"""
    return out

if __name__ == '__main__':
    kw = eval('dict(' + (sys.argv[2] if len(sys.argv) > 2 else '') + ')')
    open(sys.argv[1], 'w').write(gen(**kw))
```
